```python
import torch

def _softmax(x, axis=-1):
    return torch.softmax(x, dim=axis)
def _gelu(x):
    return torch.nn.functional.gelu(x, approximate="tanh")
def _silu(x):
    return torch.nn.functional.silu(x)
def _sigmoid(x):
    return torch.sigmoid(x)
def _layernorm(x, axis=-1, eps=1e-5):
    m = x.mean(dim=axis, keepdim=True)
    v = x.var(dim=axis, keepdim=True, unbiased=False)
    return (x - m) / torch.sqrt(v + eps)
def _scatter_add(tgt, idx, src, axis=0):
    return tgt.clone().index_add_(axis, idx, src)
def _segment_sum(src, seg, n):
    out = torch.zeros((n,) + src.shape[1:], dtype=src.dtype)
    return out.index_add_(0, seg, src)
def _pad(x, pw):
    flat = tuple(v for pair in reversed(pw) for v in pair)
    return torch.nn.functional.pad(x, flat)

kernel_name = 'standalone__gqa_softmax__near_ridge'

def setup_inputs():

    _w = (lambda a: (lambda t: t.to(torch.bfloat16) if t.is_floating_point() else t)(torch.as_tensor(a)))
    B, Hq, Hkv, Sq, Sk, D = 8, 32, 8, 80, 1024, 128
    return {
        "q": _w((lambda *s: torch.randn(*s, dtype=torch.bfloat16) * 0.8)(B, Hq, Sq, D)),
        "k": _w((lambda *s: torch.randn(*s, dtype=torch.bfloat16) * 0.8)(B, Hkv, Sk, D)),
        "v": _w((lambda *s: torch.randn(*s, dtype=torch.bfloat16) * 0.05)(B, Hkv, Sk, D)),
    }

def reference(q, k, v):
    B, Hq, Sq, D = q.shape
    Hkv = k.shape[1]
    rep = Hq // Hkv
    k = (lambda x, n, axis: torch.repeat_interleave(x, n, dim=axis))(k, rep, axis=1)
    v = (lambda x, n, axis: torch.repeat_interleave(x, n, dim=axis))(v, rep, axis=1)
    scale = D ** -0.5
    scores = torch.einsum("bhqd,bhkd->bhqk", q, k) * scale
    p = _softmax(scores, axis=-1)
    return torch.einsum("bhqk,bhkd->bhqd", p, v)
```

```python
import sys
import numpy as np

C_SCALE = np.float32(1.4426950408889634 / np.sqrt(128.0))
T_LOG2 = 8.0
THR_RAW = np.float32(T_LOG2 / float(C_SCALE))


def f32hex(x):
    return "0x%08x" % int(np.float32(x).view(np.uint32))


V_TID = 0
V_TMP = [1, 2, 3, 4, 5, 6, 7, 8, 9]
V_KD = [10, 11, 12, 13]
V_VD = [14, 15]
V_KR = [16, 17, 18, 19]
V_VR = [20, 21]
V_QOFF = 22
V_LANE16 = 23
V_OUT = 24
V_MREF = [25, 26, 27, 28, 29]
V_THR = [30, 31, 32, 33, 34]
V_NEGM = [35, 36, 37, 38, 39]
V_ONES = 40
V_S = [44, 52]
V_P = [60, 64]
V_L = 68
V_KF = 88
V_VF = 120
V_E = 152

A_O = 0
A_Q = 160

S_Q, S_K, S_V, S_OUTP = 4, 6, 8, 10
SRD_Q, SRD_K, SRD_V, SRD_O = 12, 16, 20, 24
S_WAVE = 28
S_T0 = 29
S_LDSB = 30
S_KOFFA, S_KOFFB = 31, 32
S_VOFFA, S_VOFFB = 33, 34
S_CNT = 35
S_C = 36
S_FIRST = 37
S_T1 = 38
S_T2 = 39
S_T3 = 40
S_HEAD = 41
NUM_SGPR = 48

LDS_WAVE = 32768
LDS_ML = 4 * LDS_WAVE
LDS_TOTAL = LDS_ML + 4 * 5 * 16 * 8

NBLK = 8


def vr(b, n=1):
    return f"v{b}" if n == 1 else f"v[{b}:{b+n-1}]"


def ar(b, n=1):
    return f"a{b}" if n == 1 else f"a[{b}:{b+n-1}]"


def regs(prefix, b, n):
    return [f"{prefix}{b+i}" for i in range(n)]


class Ins:
    __slots__ = ("text", "kind", "rd", "wr", "srcc", "slots")

    def __init__(self, text, kind, rd=(), wr=(), srcc=(), slots=1):
        self.text = text
        self.kind = kind
        self.rd = list(rd)
        self.wr = list(wr)
        self.srcc = list(srcc)
        self.slots = slots


class Prog:
    def __init__(self):
        self.ins = []

    def add(self, i):
        self.ins.append(i)
        return i

    def salu(self, text, rd=(), wr=()):
        return self.add(Ins(text, "salu", rd, wr))

    def valu(self, text, rd=(), wr=()):
        return self.add(Ins(text, "valu", rd, wr))

    def trans(self, text, rd=(), wr=()):
        return self.add(Ins(text, "trans", rd, wr, slots=2))

    def wait(self, text):
        return self.add(Ins(text, "wait"))

    def nop(self, n):
        return self.add(Ins(f"s_nop {n}", "nop", slots=n + 1))

    def label(self, name):
        return self.add(Ins(f"{name}:", "label"))

    def branch(self, text):
        return self.add(Ins(text, "branch"))

    def ds(self, text, rd=(), wr=()):
        return self.add(Ins(text, "ds", rd, wr))

    def vmem(self, text, rd=(), wr=()):
        return self.add(Ins(text, "vmem", rd, wr))


def mfma(dst_pref, dst, a_pref, a, b_pref, b, c_zero=False):
    d = f"{dst_pref}[{dst}:{dst+3}]"
    aa = f"{a_pref}[{a}:{a+3}]"
    bb = f"{b_pref}[{b}:{b+3}]"
    cc = "0" if c_zero else d
    rd = regs(a_pref, a, 4) + regs(b_pref, b, 4)
    srcc = [] if c_zero else regs(dst_pref, dst, 4)
    return Ins(f"v_mfma_f32_16x16x32_bf16 {d}, {aa}, {bb}, {cc}", "mfma", rd + srcc, regs(dst_pref, dst, 4),
               srcc=srcc, slots=2)


def KF(t, s):
    return V_KF + 4 * (4 * t + s)


def VF(i):
    return V_VF + 4 * i


def AO(i, r):
    return A_O + 4 * (8 * r + i)


def AQ(r, s):
    return A_Q + 4 * (4 * r + s)


def VL(r):
    return V_L + 4 * r


def dma_group(p, srd, vdma_regs, soff_sgpr, m0_imm, jlist):
    out = []
    out.append(Ins(f"s_add_u32 m0, s{S_LDSB}, {m0_imm}", "salu", [f"s{S_LDSB}"], ["m0"]))
    for q, j in enumerate(jlist):
        vo = vdma_regs[j % len(vdma_regs)]
        out.append(Ins(f"buffer_load_dwordx4 v{vo}, s[{srd}:{srd+3}], s{soff_sgpr} offen offset:{q*1024} lds",
                       "vmem", [f"v{vo}", f"s{soff_sgpr}", "m0"], []))
    return out


def k_dma(slab):
    base = slab * 8192
    g0 = dma_group(None, SRD_K, V_KD, S_KOFFA, base, [0, 1, 2, 3])
    g1 = dma_group(None, SRD_K, V_KD, S_KOFFB, base + 4096, [4, 5, 6, 7])
    upd = [Ins(f"s_add_u32 s{S_KOFFA}, s{S_KOFFA}, 8192", "salu", [f"s{S_KOFFA}"], [f"s{S_KOFFA}"]),
           Ins(f"s_add_u32 s{S_KOFFB}, s{S_KOFFB}, 8192", "salu", [f"s{S_KOFFB}"], [f"s{S_KOFFB}"])]
    return g0 + g1 + upd


def v_dma(slab):
    base = 16384 + slab * 8192
    g0 = dma_group(None, SRD_V, V_VD, S_VOFFA, base, [0, 1, 2, 3])
    g1 = dma_group(None, SRD_V, V_VD, S_VOFFB, base + 4096, [4, 5, 6, 7])
    upd = [Ins(f"s_add_u32 s{S_VOFFA}, s{S_VOFFA}, 8192", "salu", [f"s{S_VOFFA}"], [f"s{S_VOFFA}"]),
           Ins(f"s_add_u32 s{S_VOFFB}, s{S_VOFFB}, 8192", "salu", [f"s{S_VOFFB}"], [f"s{S_VOFFB}"])]
    return g0 + g1 + upd


def straight(p, lst):
    for x in lst:
        p.add(x)
        if "m0" in x.wr:
            p.nop(0)


def k_frag_read(t, s, slab):
    off = slab * 8192 + t * 4096
    return Ins(f"ds_read_b128 {vr(KF(t, s), 4)}, v{V_KR[s]} offset:{off}", "ds", [f"v{V_KR[s]}"],
               regs("v", KF(t, s), 4))


def v_frag_read(i, h, slab):
    off = 16384 + slab * 8192 + h * 4096 + (i >> 1) * 256
    d = VF(i) + 2 * h
    return Ins(f"ds_read_b64_tr_b16 {vr(d, 2)}, v{V_VR[i & 1]} offset:{off}", "ds", [f"v{V_VR[i & 1]}"],
               regs("v", d, 2))


def qk_mfmas(sbuf, rnext):
    out = []
    for t in range(2):
        for s in range(4):
            out.append(mfma("v", V_S[sbuf] + 4 * t, "v", KF(t, s), "a", AQ(rnext, s), c_zero=(s == 0)))
    return out


def pv_mfmas(pbuf, rprev):
    out = []
    for i in range(8):
        out.append(mfma("a", AO(i, rprev), "v", VF(i), "v", V_P[pbuf]))
    out.append(mfma("v", VL(rprev), "v", V_ONES, "v", V_P[pbuf]))
    return out


def sm_valu(sbuf, pbuf, r, tag):
    S = [V_S[sbuf] + k for k in range(8)]
    mx0, mx1 = V_TMP[0], V_TMP[1]
    out = []
    out.append(Ins(f"v_max3_f32 v{mx0}, v{S[0]}, v{S[1]}, v{S[2]}", "valu", [f"v{S[0]}", f"v{S[1]}", f"v{S[2]}"],
                   [f"v{mx0}"]))
    out.append(Ins(f"v_max3_f32 v{mx1}, v{S[3]}, v{S[4]}, v{S[5]}", "valu", [f"v{S[3]}", f"v{S[4]}", f"v{S[5]}"],
                   [f"v{mx1}"]))
    out.append(Ins(f"v_max3_f32 v{mx0}, v{S[6]}, v{S[7]}, v{mx0}", "valu", [f"v{S[6]}", f"v{S[7]}", f"v{mx0}"],
                   [f"v{mx0}"]))
    out.append(Ins(f"v_max_f32 v{mx0}, v{mx0}, v{mx1}", "valu", [f"v{mx0}", f"v{mx1}"], [f"v{mx0}"]))
    out.append(Ins(f"v_cmp_gt_f32 vcc, v{mx0}, v{V_THR[r]}", "valu", [f"v{mx0}", f"v{V_THR[r]}"], ["vcc"]))
    out.append(Ins(f"s_cbranch_vccnz SLOW_{tag}", "branch", ["vcc"], []))
    out.append(Ins(f"RET_{tag}:", "label"))
    for k in range(8):
        out.append(Ins(f"v_fma_f32 v{S[k]}, v{S[k]}, s{S_C}, v{V_NEGM[r]}", "valu",
                       [f"v{S[k]}", f"s{S_C}", f"v{V_NEGM[r]}"], [f"v{S[k]}"]))
    for k in range(8):
        out.append(Ins(f"v_exp_f32 v{S[k]}, v{S[k]}", "trans", [f"v{S[k]}"], [f"v{S[k]}"], slots=2))
    for q in range(4):
        d = V_P[pbuf] + q
        out.append(Ins(f"v_cvt_pk_bf16_f32 v{d}, v{S[2*q]}, v{S[2*q+1]}", "valu",
                       [f"v{S[2*q]}", f"v{S[2*q+1]}"], [f"v{d}"]))
    return out


def merge_step(p, mf, valu, pre=(), attach=None, budget=2):
    attach = attach or {}
    for x in pre:
        p.add(x)
    vi = 0
    for k, m in enumerate(mf):
        p.add(m)
        for x in attach.get(k, []):
            p.add(x)
        used = 0
        while vi < len(valu):
            nxt = valu[vi]
            if nxt.kind == "label":
                p.add(nxt)
                vi += 1
                continue
            if used + nxt.slots > budget and used > 0:
                break
            p.add(nxt)
            used += nxt.slots
            vi += 1
    while vi < len(valu):
        p.add(valu[vi])
        vi += 1


def slow_path(p, r, tag):
    mx, tA, tB, tC = V_TMP[0], V_TMP[2], V_TMP[3], V_TMP[4]
    p.label(f"SLOW_{tag}")
    p.valu(f"v_mov_b32 v{tA}, v{mx}", [f"v{mx}"], [f"v{tA}"])
    p.nop(1)
    p.valu(f"v_permlane16_swap_b32 v{mx}, v{tA}", [f"v{mx}", f"v{tA}"], [f"v{mx}", f"v{tA}"])
    p.nop(0)
    p.valu(f"v_max_f32 v{mx}, v{mx}, v{tA}", [f"v{mx}", f"v{tA}"], [f"v{mx}"])
    p.valu(f"v_mov_b32 v{tA}, v{mx}", [f"v{mx}"], [f"v{tA}"])
    p.nop(1)
    p.valu(f"v_permlane32_swap_b32 v{mx}, v{tA}", [f"v{mx}", f"v{tA}"], [f"v{mx}", f"v{tA}"])
    p.nop(0)
    p.valu(f"v_max_f32 v{mx}, v{mx}, v{tA}", [f"v{mx}", f"v{tA}"], [f"v{mx}"])
    p.valu(f"v_max_f32 v{tB}, v{V_MREF[r]}, v{mx}", [f"v{V_MREF[r]}", f"v{mx}"], [f"v{tB}"])
    p.valu(f"v_sub_f32 v{tC}, v{V_MREF[r]}, v{tB}", [f"v{V_MREF[r]}", f"v{tB}"], [f"v{tC}"])
    p.valu(f"v_mul_f32 v{tC}, s{S_C}, v{tC}", [f"s{S_C}", f"v{tC}"], [f"v{tC}"])
    p.trans(f"v_exp_f32 v{tC}, v{tC}", [f"v{tC}"], [f"v{tC}"])
    p.valu(f"v_mov_b32 v{V_MREF[r]}, v{tB}", [f"v{tB}"], [f"v{V_MREF[r]}"])
    p.valu(f"v_add_f32 v{V_THR[r]}, {f32hex(THR_RAW)}, v{tB}", [f"v{tB}"], [f"v{V_THR[r]}"])
    p.valu(f"v_mul_f32 v{V_NEGM[r]}, {f32hex(-C_SCALE)}, v{tB}", [f"v{tB}"], [f"v{V_NEGM[r]}"])
    p.salu(f"s_cmp_lg_u32 s{S_FIRST}, 0", [f"s{S_FIRST}"], ["scc"])
    p.branch(f"s_cbranch_scc1 RET_{tag}")
    p.nop(7)
    tmps = [V_TMP[5], V_TMP[6], V_TMP[7], V_TMP[8]]
    for i in range(8):
        for q in range(4):
            a = AO(i, r) + q
            t = tmps[q]
            p.valu(f"v_accvgpr_read_b32 v{t}, a{a}", [f"a{a}"], [f"v{t}"])
        p.nop(0)
        for q in range(4):
            t = tmps[q]
            p.valu(f"v_mul_f32 v{t}, v{t}, v{tC}", [f"v{t}", f"v{tC}"], [f"v{t}"])
        p.nop(0)
        for q in range(4):
            a = AO(i, r) + q
            t = tmps[q]
            p.valu(f"v_accvgpr_write_b32 a{a}, v{t}", [f"v{t}"], [f"a{a}"])
        p.nop(0)
    for q in range(4):
        v = VL(r) + q
        p.valu(f"v_mul_f32 v{v}, v{v}, v{tC}", [f"v{v}", f"v{tC}"], [f"v{v}"])
    p.nop(1)
    p.branch(f"s_branch RET_{tag}")


def build():
    p = Prog()
    slow_list = []

    p.salu("s_cmp_ge_u32 s2, 256", ["s2"], ["scc"])
    p.branch("s_cbranch_scc1 L_END")
    p.salu("s_load_dwordx4 s[4:7], s[0:1], 0", ["s0", "s1"], regs("s", 4, 4))
    p.salu("s_load_dwordx4 s[8:11], s[0:1], 16", ["s0", "s1"], regs("s", 8, 4))
    p.valu(f"v_lshrrev_b32 v{V_TMP[0]}, 6, v0", ["v0"], [f"v{V_TMP[0]}"])
    p.valu(f"v_and_b32 v{V_TMP[1]}, 63, v0", ["v0"], [f"v{V_TMP[1]}"])
    p.valu(f"v_readfirstlane_b32 s{S_WAVE}, v{V_TMP[0]}", [f"v{V_TMP[0]}"], [f"s{S_WAVE}"])
    lane = V_TMP[1]
    n_, g_ = V_TMP[2], V_TMP[3]
    p.valu(f"v_and_b32 v{n_}, 15, v{lane}", [f"v{lane}"], [f"v{n_}"])
    p.valu(f"v_lshrrev_b32 v{g_}, 4, v{lane}", [f"v{lane}"], [f"v{g_}"])
    p.salu(f"s_and_b32 s{S_T0}, s2, 7", ["s2"], [f"s{S_T0}"])
    p.salu(f"s_lshl_b32 s{S_T0}, s{S_T0}, 3", [f"s{S_T0}"], [f"s{S_T0}"])
    p.salu(f"s_lshr_b32 s{S_T1}, s2, 5", ["s2"], [f"s{S_T1}"])
    p.salu(f"s_add_u32 s{S_T0}, s{S_T0}, s{S_T1}", [f"s{S_T0}", f"s{S_T1}"], [f"s{S_T0}"])
    p.salu(f"s_lshr_b32 s{S_T1}, s2, 3", ["s2"], [f"s{S_T1}"])
    p.salu(f"s_and_b32 s{S_T1}, s{S_T1}, 3", [f"s{S_T1}"], [f"s{S_T1}"])
    p.salu(f"s_lshl_b32 s{S_HEAD}, s{S_T0}, 2", [f"s{S_T0}"], [f"s{S_HEAD}"])
    p.salu(f"s_add_u32 s{S_HEAD}, s{S_HEAD}, s{S_T1}", [f"s{S_HEAD}", f"s{S_T1}"], [f"s{S_HEAD}"])
    p.salu(f"s_lshl_b32 s{S_LDSB}, s{S_WAVE}, 15", [f"s{S_WAVE}"], [f"s{S_LDSB}"])
    p.salu(f"s_lshl_b32 s{S_T2}, s{S_T0}, 18", [f"s{S_T0}"], [f"s{S_T2}"])
    p.salu(f"s_lshl_b32 s{S_T3}, s{S_WAVE}, 16", [f"s{S_WAVE}"], [f"s{S_T3}"])
    p.salu(f"s_add_u32 s{S_T2}, s{S_T2}, s{S_T3}", [f"s{S_T2}", f"s{S_T3}"], [f"s{S_T2}"])
    p.salu(f"s_mul_i32 s{S_T3}, s{S_HEAD}, 20480", [f"s{S_HEAD}"], [f"s{S_T3}"])
    p.wait("s_waitcnt lgkmcnt(0)")
    for (srd, ptr, off, size) in ((SRD_Q, S_Q, S_T3, 20480), (SRD_K, S_K, S_T2, 65536), (SRD_V, S_V, S_T2, 65536),
                                  (SRD_O, S_OUTP, S_T3, 20480)):
        p.salu(f"s_add_u32 s{srd}, s{ptr}, s{off}", [f"s{ptr}", f"s{off}"], [f"s{srd}", "scc"])
        p.salu(f"s_addc_u32 s{srd+1}, s{ptr+1}, 0", [f"s{ptr+1}", "scc"], [f"s{srd+1}"])
        p.salu(f"s_mov_b32 s{srd+2}, {size}", [], [f"s{srd+2}"])
        p.salu(f"s_mov_b32 s{srd+3}, 0x00020000", [], [f"s{srd+3}"])
    t0, t1, t2 = V_TMP[4], V_TMP[5], V_TMP[6]
    p.valu(f"v_lshlrev_b32 v{t0}, 8, v{n_}", [f"v{n_}"], [f"v{t0}"])
    p.valu(f"v_lshl_add_u32 v{V_QOFF}, v{g_}, 4, v{t0}", [f"v{g_}", f"v{t0}"], [f"v{V_QOFF}"])
    p.valu(f"v_xor_b32 v{t1}, v{n_}, v{g_}", [f"v{n_}", f"v{g_}"], [f"v{t1}"])
    p.valu(f"v_lshlrev_b32 v{t2}, 8, v{g_}", [f"v{g_}"], [f"v{t2}"])
    p.valu(f"v_lshl_add_u32 v{V_KD[0]}, v{t1}, 4, v{t2}", [f"v{t1}", f"v{t2}"], [f"v{V_KD[0]}"])
    for jj in range(1, 4):
        p.valu(f"v_xor_b32 v{V_KD[jj]}, {64*jj}, v{V_KD[0]}", [f"v{V_KD[0]}"], [f"v{V_KD[jj]}"])
    p.valu(f"v_lshl_add_u32 v{V_KR[0]}, v{t1}, 4, v{t0}", [f"v{t1}", f"v{t0}"], [f"v{V_KR[0]}"])
    p.valu(f"v_add_u32 v{V_KR[0]}, s{S_LDSB}, v{V_KR[0]}", [f"s{S_LDSB}", f"v{V_KR[0]}"], [f"v{V_KR[0]}"])
    for s in range(1, 4):
        p.valu(f"v_xor_b32 v{V_KR[s]}, {64*s}, v{V_KR[0]}", [f"v{V_KR[0]}"], [f"v{V_KR[s]}"])
    p.valu(f"v_bfe_u32 v{t0}, v{lane}, 1, 2", [f"v{lane}"], [f"v{t0}"])
    p.valu(f"v_lshlrev_b32 v{t0}, 8, v{t0}", [f"v{t0}"], [f"v{t0}"])
    p.valu(f"v_lshrrev_b32 v{t1}, 3, v{lane}", [f"v{lane}"], [f"v{t1}"])
    p.valu(f"v_lshl_add_u32 v{t0}, v{t1}, 5, v{t0}", [f"v{t1}", f"v{t0}"], [f"v{t0}"])
    p.valu(f"v_and_b32 v{t1}, 1, v{lane}", [f"v{lane}"], [f"v{t1}"])
    p.valu(f"v_lshl_add_u32 v{V_VD[0]}, v{t1}, 4, v{t0}", [f"v{t1}", f"v{t0}"], [f"v{V_VD[0]}"])
    p.valu(f"v_xor_b32 v{V_VD[1]}, 32, v{V_VD[0]}", [f"v{V_VD[0]}"], [f"v{V_VD[1]}"])
    p.valu(f"v_lshlrev_b32 v{t0}, 10, v{g_}", [f"v{g_}"], [f"v{t0}"])
    p.valu(f"v_and_b32 v{t1}, 1, v{g_}", [f"v{g_}"], [f"v{t1}"])
    p.valu(f"v_lshl_add_u32 v{t0}, v{t1}, 7, v{t0}", [f"v{t1}", f"v{t0}"], [f"v{t0}"])
    p.valu(f"v_bfe_u32 v{t1}, v{lane}, 2, 2", [f"v{lane}"], [f"v{t1}"])
    p.valu(f"v_lshl_add_u32 v{t0}, v{t1}, 5, v{t0}", [f"v{t1}", f"v{t0}"], [f"v{t0}"])
    p.valu(f"v_and_b32 v{t1}, 3, v{lane}", [f"v{lane}"], [f"v{t1}"])
    p.valu(f"v_lshl_add_u32 v{t0}, v{t1}, 3, v{t0}", [f"v{t1}", f"v{t0}"], [f"v{t0}"])
    p.valu(f"v_add_u32 v{V_VR[0]}, s{S_LDSB}, v{t0}", [f"s{S_LDSB}", f"v{t0}"], [f"v{V_VR[0]}"])
    p.valu(f"v_xor_b32 v{V_VR[1]}, 128, v{V_VR[0]}", [f"v{V_VR[0]}"], [f"v{V_VR[1]}"])
    p.valu(f"v_lshlrev_b32 v{V_LANE16}, 4, v{lane}", [f"v{lane}"], [f"v{V_LANE16}"])
    p.valu(f"v_lshlrev_b32 v{t0}, 8, v{n_}", [f"v{n_}"], [f"v{t0}"])
    p.valu(f"v_lshl_add_u32 v{V_OUT}, v{g_}, 3, v{t0}", [f"v{g_}", f"v{t0}"], [f"v{V_OUT}"])
    p.salu(f"s_mov_b32 s{S_KOFFA}, 0", [], [f"s{S_KOFFA}"])
    p.salu(f"s_mov_b32 s{S_KOFFB}, 4096", [], [f"s{S_KOFFB}"])
    p.salu(f"s_mov_b32 s{S_VOFFA}, 0", [], [f"s{S_VOFFA}"])
    p.salu(f"s_mov_b32 s{S_VOFFB}, 4096", [], [f"s{S_VOFFB}"])
    p.salu(f"s_mov_b32 s{S_C}, {f32hex(C_SCALE)}", [], [f"s{S_C}"])
    p.salu(f"s_mov_b32 s{S_FIRST}, 1", [], [f"s{S_FIRST}"])
    p.salu(f"s_mov_b32 s{S_CNT}, 0", [], [f"s{S_CNT}"])
    for r in range(5):
        p.salu(f"s_mov_b32 s{S_T0}, {4096*r}", [], [f"s{S_T0}"]) if r > 0 else None
        for s in range(4):
            so = "0" if r == 0 else f"s{S_T0}"
            p.vmem(f"buffer_load_dwordx4 {ar(AQ(r, s), 4)}, v{V_QOFF}, s[{SRD_Q}:{SRD_Q+3}], {so} offen offset:{64*s}",
                   [f"v{V_QOFF}"] + ([] if r == 0 else [f"s{S_T0}"]), regs("a", AQ(r, s), 4))
    straight(p, k_dma(0))
    straight(p, v_dma(0))
    straight(p, k_dma(1))
    straight(p, v_dma(1))
    for a in range(160):
        p.valu(f"v_accvgpr_write_b32 a{a}, 0", [], [f"a{a}"])
    for v in range(V_L, V_L + 20):
        p.valu(f"v_mov_b32 v{v}, 0", [], [f"v{v}"])
    for v in range(V_VF, V_VF + 32):
        p.valu(f"v_mov_b32 v{v}, 0", [], [f"v{v}"])
    for v in range(V_P[0], V_P[0] + 8):
        p.valu(f"v_mov_b32 v{v}, 0", [], [f"v{v}"])
    for q in range(4):
        p.valu(f"v_mov_b32 v{V_ONES+q}, 0x3f803f80", [], [f"v{V_ONES+q}"])
    for r in range(5):
        p.valu(f"v_mov_b32 v{V_MREF[r]}, 0xff800000", [], [f"v{V_MREF[r]}"])
        p.valu(f"v_mov_b32 v{V_THR[r]}, 0xff800000", [], [f"v{V_THR[r]}"])
        p.valu(f"v_mov_b32 v{V_NEGM[r]}, 0", [], [f"v{V_NEGM[r]}"])
    p.wait("s_waitcnt vmcnt(24)")
    for t in range(2):
        for s in range(4):
            p.add(k_frag_read(t, s, 0))
    p.wait("s_waitcnt lgkmcnt(0)")
    straight(p, k_dma(0))
    for m in qk_mfmas(0, 0):
        p.add(m)
    p.nop(7)

    def emit_block(pb, kdma, vdma, wait_v, wait_k, kread, last, tagp):
        for r in range(5):
            upar = (pb + r) & 1
            rn = (r + 1) % 5
            rp = (r - 1) % 5
            if last and r == 4:
                mf = pv_mfmas(upar ^ 1, rp)
                off = 0
            else:
                mf = qk_mfmas(upar ^ 1, rn) + pv_mfmas(upar ^ 1, rp)
                off = 8
            tag = f"{tagp}_{r}"
            slow_list.append((r, tag))
            va = sm_valu(upar, upar, r, tag)
            pre = []
            attach = {}
            if last and r == 4:
                pre.append(Ins("s_nop 1", "nop", slots=2))
            if r == 3 and kread:
                pre.append(Ins(f"s_waitcnt vmcnt({wait_k})", "wait"))
                k = 0
                for t in range(2):
                    for s_ in range(4):
                        attach[k] = [k_frag_read(t, s_, pb ^ 1)]
                        k += 1
            elif r == 4 and kread:
                pre.append(Ins("s_waitcnt lgkmcnt(0)", "wait"))
                if kdma:
                    d = k_dma(pb ^ 1)
                    attach[0] = [d[0]]
                    for q in range(4):
                        attach[1 + q] = [d[1 + q]]
                    attach[5] = [d[5]]
                    for q in range(4):
                        attach[6 + q] = [d[6 + q]]
                    attach[10] = [d[10], d[11]]
            elif r == 0:
                pre.append(Ins(f"s_waitcnt vmcnt({wait_v})", "wait"))
                for i in range(8):
                    attach[8 + i] = [v_frag_read(i, 0, pb), v_frag_read(i, 1, pb)]
            elif r == 1:
                pre.append(Ins("s_waitcnt lgkmcnt(0)", "wait"))
                if vdma:
                    d = v_dma(pb)
                    attach[0] = [d[0]]
                    for q in range(4):
                        attach[1 + q] = [d[1 + q]]
                    attach[5] = [d[5]]
                    for q in range(4):
                        attach[6 + q] = [d[6 + q]]
                    attach[10] = [d[10], d[11]]
            merge_step(p, mf, va, pre=pre, attach=attach)

    p.label("L_LOOP")
    for pb in range(2):
        emit_block(pb, True, True, 24, 24, True, False, f"{pb}")
        if pb == 0:
            p.salu(f"s_mov_b32 s{S_FIRST}, 0", [], [f"s{S_FIRST}"])
    p.salu(f"s_add_u32 s{S_CNT}, s{S_CNT}, 1", [f"s{S_CNT}"], [f"s{S_CNT}", "scc"])
    p.salu(f"s_cmp_lt_u32 s{S_CNT}, {(NBLK-2)//2}", [f"s{S_CNT}"], ["scc"])
    p.branch("s_cbranch_scc1 L_LOOP")
    emit_block(0, False, False, 16, 8, True, False, "6")
    emit_block(1, False, False, 0, 0, False, True, "7")

    p.nop(1)
    for m in pv_mfmas(1, 4):
        p.add(m)

    epilogue(p)
    p.label("L_END")
    p.add(Ins("s_endpgm", "branch"))
    for (r, tag) in slow_list:
        slow_path(p, r, tag)
    return p


def epilogue(p):
    E = V_E
    p.wait("s_waitcnt vmcnt(0)")
    p.nop(7)
    p.nop(7)
    t0, t1 = V_TMP[0], V_TMP[1]
    p.valu(f"v_and_b32 v{t0}, 15, v0", ["v0"], [f"v{t0}"])
    p.salu(f"s_mul_i32 s{S_T0}, s{S_WAVE}, 640", [f"s{S_WAVE}"], [f"s{S_T0}"])
    p.salu(f"s_add_u32 s{S_T0}, s{S_T0}, {LDS_ML}", [f"s{S_T0}"], [f"s{S_T0}"])
    p.valu(f"v_lshl_add_u32 v{t1}, v{t0}, 3, s{S_T0}", [f"v{t0}", f"s{S_T0}"], [f"v{t1}"])
    p.valu(f"v_lshlrev_b32 v{t0}, 3, v{t0}", [f"v{t0}"], [f"v{t0}"])
    p.valu(f"v_add_u32 v{t0}, {LDS_ML}, v{t0}", [f"v{t0}"], [f"v{t0}"])
    for r in range(5):
        p.ds(f"ds_write2_b32 v{t1}, v{V_MREF[r]}, v{VL(r)} offset0:{32*r} offset1:{32*r+1}",
             [f"v{t1}", f"v{V_MREF[r]}", f"v{VL(r)}"], [])
    p.salu(f"s_cmp_eq_u32 s{S_WAVE}, 1", [f"s{S_WAVE}"], ["scc"])
    p.branch("s_cbranch_scc1 L_EPI1")
    p.salu(f"s_cmp_eq_u32 s{S_WAVE}, 2", [f"s{S_WAVE}"], ["scc"])
    p.branch("s_cbranch_scc1 L_EPI2")
    p.salu(f"s_cmp_eq_u32 s{S_WAVE}, 3", [f"s{S_WAVE}"], ["scc"])
    p.branch("s_cbranch_scc1 L_EPI3")
    for w in range(4):
        p.label(f"L_EPI{w}")
        epilogue_wave(p, w)
        if w < 3:
            p.branch("s_branch L_END")


def epilogue_wave(p, w):
    E = V_E
    vw = E
    p.valu(f"v_add_u32 v{vw}, {w*LDS_WAVE}, v{V_LANE16}", [f"v{V_LANE16}"], [f"v{vw}"])
    for k in range(3):
        wd = (w + 1 + k) & 3
        for ti in range(10):
            i = 2 * wd + (ti // 5)
            r = ti % 5
            off = k * 10240 + ti * 1024
            a = AO(i, r)
            p.ds(f"ds_write_b128 v{vw}, {ar(a, 4)} offset:{off}", [f"v{vw}"] + regs("a", a, 4), [])
    p.wait("s_waitcnt lgkmcnt(0)")
    p.add(Ins("s_barrier", "salu"))
    n8 = V_TMP[0]
    MLB = E + 2
    for ws in range(4):
        for r in range(5):
            d = MLB + 2 * (ws * 5 + r)
            p.ds(f"ds_read_b64 {vr(d, 2)}, v{n8} offset:{ws*640 + r*128}", [f"v{n8}"], regs("v", d, 2))
    p.wait("s_waitcnt lgkmcnt(0)")
    FB = MLB + 40
    ta, tb = V_TMP[2], V_TMP[3]
    for r in range(5):
        m = [MLB + 2 * (ws * 5 + r) for ws in range(4)]
        l = [x + 1 for x in m]
        f = [FB + ws * 5 + r for ws in range(4)]
        p.valu(f"v_max3_f32 v{ta}, v{m[0]}, v{m[1]}, v{m[2]}", [f"v{m[0]}", f"v{m[1]}", f"v{m[2]}"], [f"v{ta}"])
        p.valu(f"v_max_f32 v{ta}, v{ta}, v{m[3]}", [f"v{ta}", f"v{m[3]}"], [f"v{ta}"])
        for ws in range(4):
            p.valu(f"v_sub_f32 v{f[ws]}, v{m[ws]}, v{ta}", [f"v{m[ws]}", f"v{ta}"], [f"v{f[ws]}"])
        for ws in range(4):
            p.valu(f"v_mul_f32 v{f[ws]}, s{S_C}, v{f[ws]}", [f"s{S_C}", f"v{f[ws]}"], [f"v{f[ws]}"])
        for ws in range(4):
            p.trans(f"v_exp_f32 v{f[ws]}, v{f[ws]}", [f"v{f[ws]}"], [f"v{f[ws]}"])
        p.nop(0)
        p.valu(f"v_mul_f32 v{tb}, v{f[0]}, v{l[0]}", [f"v{f[0]}", f"v{l[0]}"], [f"v{tb}"])
        for ws in range(1, 4):
            p.valu(f"v_fmac_f32 v{tb}, v{f[ws]}, v{l[ws]}", [f"v{tb}", f"v{f[ws]}", f"v{l[ws]}"], [f"v{tb}"])
        p.trans(f"v_rcp_f32 v{tb}, v{tb}", [f"v{tb}"], [f"v{tb}"])
        p.nop(0)
        for ws in range(4):
            p.valu(f"v_mul_f32 v{f[ws]}, v{f[ws]}, v{tb}", [f"v{f[ws]}", f"v{tb}"], [f"v{f[ws]}"])
    RB = FB + 20
    ACC = RB + 12
    PK = ACC + 4
    if PK % 2:
        PK += 1
    srcs = [ws for ws in range(4) if ws != w]
    RA = PK + 2
    for q, ws in enumerate(srcs):
        k = (w - ws - 1) & 3
        p.valu(f"v_add_u32 v{RA+q}, {ws*LDS_WAVE + k*10240}, v{V_LANE16}", [f"v{V_LANE16}"], [f"v{RA+q}"])
    for ti in range(10):
        i = 2 * w + (ti // 5)
        r = ti % 5
        for q, ws in enumerate(srcs):
            d = RB + 4 * q
            p.ds(f"ds_read_b128 {vr(d, 4)}, v{RA+q} offset:{ti*1024}", [f"v{RA+q}"], regs("v", d, 4))
        a = AO(i, r)
        for e in range(4):
            p.valu(f"v_accvgpr_read_b32 v{ACC+e}, a{a+e}", [f"a{a+e}"], [f"v{ACC+e}"])
        p.nop(0)
        fw = FB + w * 5 + r
        for e in range(4):
            p.valu(f"v_mul_f32 v{ACC+e}, v{ACC+e}, v{fw}", [f"v{ACC+e}", f"v{fw}"], [f"v{ACC+e}"])
        p.wait("s_waitcnt lgkmcnt(0)")
        for q, ws in enumerate(srcs):
            f = FB + ws * 5 + r
            for e in range(4):
                s_ = RB + 4 * q + e
                p.valu(f"v_fmac_f32 v{ACC+e}, v{s_}, v{f}", [f"v{ACC+e}", f"v{s_}", f"v{f}"], [f"v{ACC+e}"])
        p.valu(f"v_cvt_pk_bf16_f32 v{PK}, v{ACC}, v{ACC+1}", [f"v{ACC}", f"v{ACC+1}"], [f"v{PK}"])
        p.valu(f"v_cvt_pk_bf16_f32 v{PK+1}, v{ACC+2}, v{ACC+3}", [f"v{ACC+2}", f"v{ACC+3}"], [f"v{PK+1}"])
        if r == 0:
            so = "0"
        else:
            p.salu(f"s_mov_b32 s{S_T0}, {4096*r}", [], [f"s{S_T0}"])
            so = f"s{S_T0}"
        p.vmem(f"buffer_store_dwordx2 {vr(PK, 2)}, v{V_OUT}, s[{SRD_O}:{SRD_O+3}], {so} offen offset:{32*i}",
               regs("v", PK, 2) + [f"v{V_OUT}"], [])
        p.nop(1)
    p.wait("s_waitcnt vmcnt(0)")


def check_hazards(ins):
    errs = []
    seq = [x for x in ins if x.kind not in ("label",)]
    n = len(seq)

    def dist_states(i, j):
        d = 0
        for k in range(i + 1, j):
            x = seq[k]
            d += x.slots if x.kind == "nop" else 1
        return d

    for j, y in enumerate(seq):
        for i in range(max(0, j - 24), j):
            x = seq[i]
            d = None
            if x.kind == "mfma":
                D = set(x.wr)
                if y.kind in ("valu", "trans", "ds", "vmem"):
                    if D & (set(y.rd) | set(y.wr)):
                        d = dist_states(i, j)
                        if d < 8:
                            errs.append(f"MFMA D->{y.kind} dist {d}: {x.text} | {y.text}")
                if y.kind == "mfma":
                    ab = set(y.rd) - set(y.srcc)
                    if D & ab:
                        d = dist_states(i, j)
                        if d < 8:
                            errs.append(f"MFMA D->MFMA AB dist {d}: {x.text} | {y.text}")
                    if (D & set(y.srcc)) and set(y.srcc) != D:
                        errs.append(f"MFMA D->partial SrcC: {x.text} | {y.text}")
                if y.kind in ("valu", "trans") and (set(x.srcc) & set(y.wr)):
                    d = dist_states(i, j)
                    if d < 3:
                        errs.append(f"MFMA SrcC WAR dist {d}: {x.text} | {y.text}")
            if x.kind in ("valu", "trans"):
                W = set(x.wr)
                if y.kind == "mfma" and (W & set(y.rd)):
                    d = dist_states(i, j)
                    if d < 2:
                        errs.append(f"VALU->MFMA dist {d}: {x.text} | {y.text}")
                if "permlane" in y.text and (W & set(y.rd)):
                    d = dist_states(i, j)
                    if d < 2:
                        errs.append(f"VALU->permlane dist {d}: {x.text} | {y.text}")
                if "readfirstlane" in y.text and (W & set(y.rd)):
                    d = dist_states(i, j)
                    if d < 1:
                        errs.append(f"VALU->readfirstlane dist {d}: {x.text} | {y.text}")
                sg = {r_ for r_ in W if r_.startswith("s") or r_ == "vcc"}
                if sg and y.kind in ("valu", "trans") and (sg & set(y.rd)):
                    d = dist_states(i, j)
                    if d < 2:
                        errs.append(f"VALU sgpr->VALU dist {d}: {x.text} | {y.text}")
                if sg and y.kind == "vmem" and (sg & set(y.rd)):
                    d = dist_states(i, j)
                    if d < 5:
                        errs.append(f"VALU sgpr->VMEM dist {d}: {x.text} | {y.text}")
            if x.kind == "trans" and y.kind == "valu" and (set(x.wr) & set(y.rd)):
                d = dist_states(i, j)
                if d < 1:
                    errs.append(f"trans->VALU dist {d}: {x.text} | {y.text}")
            if x.kind == "salu" and "m0" in x.wr and y.kind == "vmem" and "m0" in y.rd:
                d = dist_states(i, j)
                if d < 1:
                    errs.append(f"m0->DMA dist {d}: {x.text} | {y.text}")
            if x.kind == "vmem" and "store" in x.text and y.kind in ("valu", "trans"):
                data = {r_ for r_ in x.rd if r_.startswith("v")}
                if data & set(y.wr):
                    d = dist_states(i, j)
                    if d < 2:
                        errs.append(f"store data WAR dist {d}: {x.text} | {y.text}")
    return errs


def main(out_path):
    p = build()
    ins = p.ins
    li = next(k for k, x in enumerate(ins) if x.text == "L_LOOP:")
    le = next(k for k, x in enumerate(ins) if x.text == "s_cbranch_scc1 L_LOOP")
    endk = next(k for k, x in enumerate(ins) if x.text == "L_END:")
    body = ins[li:le + 1]
    lin = ins[:le + 1] + body + ins[le + 1:endk]
    errs = check_hazards(lin)
    errs += check_hazards(ins[endk:])
    if errs:
        print("HAZARDS:\n" + "\n".join(errs[:50]), file=sys.stderr)
        sys.exit(1)
    L = []
    L.append(f"; @launch grid=(256,1,1) block=(256,1,1) lds={LDS_TOTAL}")
    L.append('.amdgcn_target "amdgcn-amd-amdhsa--gfx950"')
    L.append(".text")
    L.append(".globl standalone__gqa_softmax__near_ridge_kernel")
    L.append(".p2align 8")
    L.append(".type standalone__gqa_softmax__near_ridge_kernel,@function")
    L.append("standalone__gqa_softmax__near_ridge_kernel:")
    for x in ins:
        if x.kind == "label":
            L.append(x.text)
        else:
            L.append("    " + x.text)
    L.append('.section .rodata,"a"')
    L.append(".p2align 6")
    L.append(".amdhsa_kernel standalone__gqa_softmax__near_ridge_kernel")
    L.append("  .amdhsa_next_free_vgpr 496")
    L.append(f"  .amdhsa_next_free_sgpr {NUM_SGPR}")
    L.append("  .amdhsa_accum_offset 256")
    L.append("  .amdhsa_group_segment_fixed_size 0")
    L.append("  .amdhsa_kernarg_size 48")
    L.append("  .amdhsa_user_sgpr_count 2")
    L.append("  .amdhsa_user_sgpr_kernarg_segment_ptr 1")
    L.append("  .amdhsa_system_sgpr_workgroup_id_x 1")
    L.append(".end_amdhsa_kernel")
    open(out_path, "w").write("\n".join(L) + "\n")
    nm = sum(1 for x in ins if x.kind == "mfma")
    print(f"wrote {out_path}: {len(ins)} instrs, {nm} mfma")


if __name__ == "__main__":
    main(sys.argv[1] if len(sys.argv) > 1 else "standalone__gqa_softmax__near_ridge.s")
```

```python
import sys
import numpy as np

C_SCALE = np.float32(1.4426950408889634 / np.sqrt(128.0))
T_LOG2 = 8.0
THR_RAW = np.float32(T_LOG2 / float(C_SCALE))


def f32hex(x):
    return "0x%08x" % int(np.float32(x).view(np.uint32))


V_TID = 0
V_TMP = [1, 2, 3, 4, 5, 6, 7, 8, 9]
V_KD = [10, 11, 12, 13]
V_VD = [14, 15]
V_KR = [16, 17, 18, 19]
V_VR = [20, 21]
V_QOFF = 22
V_LANE16 = 23
V_OUT = 24
V_MREF = [25, 26, 27, 28, 29]
V_THR = [30, 31, 32, 33, 34]
V_NEGM = [35, 36, 37, 38, 39]
V_ONES = 40
V_S = [44, 52]
V_P = [60, 64]
V_L = 68
V_KF = 88
V_VF = 120
V_E = 152

A_O = 0
A_Q = 160

S_Q, S_K, S_V, S_OUTP = 4, 6, 8, 10
SRD_Q, SRD_K, SRD_V, SRD_O = 12, 16, 20, 24
S_WAVE = 28
S_T0 = 29
S_LDSB = 30
S_KOFFA, S_KOFFB = 31, 32
S_VOFFA, S_VOFFB = 33, 34
S_CNT = 35
S_C = 36
S_FIRST = 37
S_T1 = 38
S_T2 = 39
S_T3 = 40
S_HEAD = 41
NUM_SGPR = 80

LDS_WAVE = 32768
LDS_ML = 4 * LDS_WAVE
LDS_TOTAL = LDS_ML + 4 * 5 * 16 * 8

NBLK = 8
DELTA = 0
NT = 'nt'
ROTMASK = 7
PROF = False
S_TS = 42
S_WSP = 44
SRD_WS = 48


def vr(b, n=1):
    return f"v{b}" if n == 1 else f"v[{b}:{b+n-1}]"


def ar(b, n=1):
    return f"a{b}" if n == 1 else f"a[{b}:{b+n-1}]"


def regs(prefix, b, n):
    return [f"{prefix}{b+i}" for i in range(n)]


class Ins:
    __slots__ = ("text", "kind", "rd", "wr", "srcc", "slots")

    def __init__(self, text, kind, rd=(), wr=(), srcc=(), slots=1):
        self.text = text
        self.kind = kind
        self.rd = list(rd)
        self.wr = list(wr)
        self.srcc = list(srcc)
        self.slots = slots


class Prog:
    def __init__(self):
        self.ins = []

    def add(self, i):
        self.ins.append(i)
        return i

    def salu(self, text, rd=(), wr=()):
        return self.add(Ins(text, "salu", rd, wr))

    def valu(self, text, rd=(), wr=()):
        return self.add(Ins(text, "valu", rd, wr))

    def trans(self, text, rd=(), wr=()):
        return self.add(Ins(text, "trans", rd, wr, slots=2))

    def wait(self, text):
        return self.add(Ins(text, "wait"))

    def nop(self, n):
        return self.add(Ins(f"s_nop {n}", "nop", slots=n + 1))

    def label(self, name):
        return self.add(Ins(f"{name}:", "label"))

    def branch(self, text):
        return self.add(Ins(text, "branch"))

    def ds(self, text, rd=(), wr=()):
        return self.add(Ins(text, "ds", rd, wr))

    def vmem(self, text, rd=(), wr=()):
        return self.add(Ins(text, "vmem", rd, wr))


def mfma(dst_pref, dst, a_pref, a, b_pref, b, c_zero=False):
    d = f"{dst_pref}[{dst}:{dst+3}]"
    aa = f"{a_pref}[{a}:{a+3}]"
    bb = f"{b_pref}[{b}:{b+3}]"
    cc = "0" if c_zero else d
    rd = regs(a_pref, a, 4) + regs(b_pref, b, 4)
    srcc = [] if c_zero else regs(dst_pref, dst, 4)
    return Ins(f"v_mfma_f32_16x16x32_bf16 {d}, {aa}, {bb}, {cc}", "mfma", rd + srcc, regs(dst_pref, dst, 4),
               srcc=srcc, slots=2)


def KF(t, s):
    return V_KF + 4 * (4 * t + s)


def VF(i):
    return V_VF + 4 * i


def AO(i, r):
    return A_O + 4 * (8 * r + i)


def AQ(r, s):
    return A_Q + 4 * (4 * r + s)


def VL(r):
    return V_L + 4 * r


def dma_group(p, srd, vdma_regs, soff_sgpr, m0_imm, jlist):
    out = []
    out.append(Ins(f"s_add_u32 m0, s{S_LDSB}, {m0_imm}", "salu", [f"s{S_LDSB}"], ["m0"]))
    for q, j in enumerate(jlist):
        vo = vdma_regs[j % len(vdma_regs)]
        out.append(Ins(f"buffer_load_dwordx4 v{vo}, s[{srd}:{srd+3}], s{soff_sgpr} offen offset:{q*1024} {NT} lds",
                       "vmem", [f"v{vo}", f"s{soff_sgpr}", "m0"], []))
    return out


def k_dma(slab):
    base = slab * 8192
    g0 = dma_group(None, SRD_K, V_KD, S_KOFFA, base, [0, 1, 2, 3])
    g1 = dma_group(None, SRD_K, V_KD, S_KOFFB, base + 4096, [4, 5, 6, 7])
    upd = [Ins(f"s_add_u32 s{S_KOFFB}, s{S_KOFFA}, 8192", "salu", [f"s{S_KOFFA}"], [f"s{S_KOFFB}"]),
           Ins(f"s_and_b32 s{S_KOFFA}, s{S_KOFFB}, 0xffff", "salu", [f"s{S_KOFFB}"], [f"s{S_KOFFA}"]),
           Ins(f"s_add_u32 s{S_KOFFB}, s{S_KOFFA}, 4096", "salu", [f"s{S_KOFFA}"], [f"s{S_KOFFB}"])]
    return g0 + g1 + upd


def v_dma(slab):
    base = 16384 + slab * 8192
    g0 = dma_group(None, SRD_V, V_VD, S_VOFFA, base, [0, 1, 2, 3])
    g1 = dma_group(None, SRD_V, V_VD, S_VOFFB, base + 4096, [4, 5, 6, 7])
    upd = [Ins(f"s_add_u32 s{S_VOFFB}, s{S_VOFFA}, 8192", "salu", [f"s{S_VOFFA}"], [f"s{S_VOFFB}"]),
           Ins(f"s_and_b32 s{S_VOFFA}, s{S_VOFFB}, 0xffff", "salu", [f"s{S_VOFFB}"], [f"s{S_VOFFA}"]),
           Ins(f"s_add_u32 s{S_VOFFB}, s{S_VOFFA}, 4096", "salu", [f"s{S_VOFFA}"], [f"s{S_VOFFB}"])]
    return g0 + g1 + upd


def straight(p, lst):
    for x in lst:
        p.add(x)
        if "m0" in x.wr:
            p.nop(0)


def k_frag_read(t, s, slab):
    off = slab * 8192 + t * 4096
    return Ins(f"ds_read_b128 {vr(KF(t, s), 4)}, v{V_KR[s]} offset:{off}", "ds", [f"v{V_KR[s]}"],
               regs("v", KF(t, s), 4))


def v_frag_read(i, h, slab):
    off = 16384 + slab * 8192 + h * 4096 + (i >> 1) * 256
    d = VF(i) + 2 * h
    return Ins(f"ds_read_b64_tr_b16 {vr(d, 2)}, v{V_VR[i & 1]} offset:{off}", "ds", [f"v{V_VR[i & 1]}"],
               regs("v", d, 2))


def qk_mfmas(sbuf, rnext):
    out = []
    for t in range(2):
        for s in range(4):
            out.append(mfma("v", V_S[sbuf] + 4 * t, "v", KF(t, s), "a", AQ(rnext, s), c_zero=(s == 0)))
    return out


def pv_mfmas(pbuf, rprev):
    out = []
    for i in range(8):
        out.append(mfma("a", AO(i, rprev), "v", VF(i), "v", V_P[pbuf]))
    out.append(mfma("v", VL(rprev), "v", V_ONES, "v", V_P[pbuf]))
    return out


def sm_valu(sbuf, pbuf, r, tag):
    S = [V_S[sbuf] + k for k in range(8)]
    mx0, mx1 = V_TMP[0], V_TMP[1]
    out = []
    out.append(Ins(f"v_max3_f32 v{mx0}, v{S[0]}, v{S[1]}, v{S[2]}", "valu", [f"v{S[0]}", f"v{S[1]}", f"v{S[2]}"],
                   [f"v{mx0}"]))
    out.append(Ins(f"v_max3_f32 v{mx1}, v{S[3]}, v{S[4]}, v{S[5]}", "valu", [f"v{S[3]}", f"v{S[4]}", f"v{S[5]}"],
                   [f"v{mx1}"]))
    out.append(Ins(f"v_max3_f32 v{mx0}, v{S[6]}, v{S[7]}, v{mx0}", "valu", [f"v{S[6]}", f"v{S[7]}", f"v{mx0}"],
                   [f"v{mx0}"]))
    out.append(Ins(f"v_max_f32 v{mx0}, v{mx0}, v{mx1}", "valu", [f"v{mx0}", f"v{mx1}"], [f"v{mx0}"]))
    out.append(Ins(f"v_cmp_gt_f32 vcc, v{mx0}, v{V_THR[r]}", "valu", [f"v{mx0}", f"v{V_THR[r]}"], ["vcc"]))
    out.append(Ins(f"s_cbranch_vccnz SLOW_{tag}", "branch", ["vcc"], []))
    out.append(Ins(f"RET_{tag}:", "label"))
    for k in range(8):
        out.append(Ins(f"v_fma_f32 v{S[k]}, v{S[k]}, s{S_C}, v{V_NEGM[r]}", "valu",
                       [f"v{S[k]}", f"s{S_C}", f"v{V_NEGM[r]}"], [f"v{S[k]}"]))
    for k in range(8):
        out.append(Ins(f"v_exp_f32 v{S[k]}, v{S[k]}", "trans", [f"v{S[k]}"], [f"v{S[k]}"], slots=2))
    for q in range(4):
        d = V_P[pbuf] + q
        out.append(Ins(f"v_cvt_pk_bf16_f32 v{d}, v{S[2*q]}, v{S[2*q+1]}", "valu",
                       [f"v{S[2*q]}", f"v{S[2*q+1]}"], [f"v{d}"]))
    return out


def merge_step(p, mf, valu, pre=(), attach=None, budget=2):
    attach = attach or {}
    for x in pre:
        p.add(x)
    vi = 0
    for k, m in enumerate(mf):
        p.add(m)
        for x in attach.get(k, []):
            p.add(x)
        used = 0
        while vi < len(valu):
            nxt = valu[vi]
            if nxt.kind == "label":
                p.add(nxt)
                vi += 1
                continue
            if used + nxt.slots > budget and used > 0:
                break
            p.add(nxt)
            used += nxt.slots
            vi += 1
    while vi < len(valu):
        p.add(valu[vi])
        vi += 1


def slow_path(p, r, tag):
    mx, tA, tB, tC = V_TMP[0], V_TMP[2], V_TMP[3], V_TMP[4]
    p.label(f"SLOW_{tag}")
    p.valu(f"v_mov_b32 v{tA}, v{mx}", [f"v{mx}"], [f"v{tA}"])
    p.nop(1)
    p.valu(f"v_permlane16_swap_b32 v{mx}, v{tA}", [f"v{mx}", f"v{tA}"], [f"v{mx}", f"v{tA}"])
    p.nop(0)
    p.valu(f"v_max_f32 v{mx}, v{mx}, v{tA}", [f"v{mx}", f"v{tA}"], [f"v{mx}"])
    p.valu(f"v_mov_b32 v{tA}, v{mx}", [f"v{mx}"], [f"v{tA}"])
    p.nop(1)
    p.valu(f"v_permlane32_swap_b32 v{mx}, v{tA}", [f"v{mx}", f"v{tA}"], [f"v{mx}", f"v{tA}"])
    p.nop(0)
    p.valu(f"v_max_f32 v{mx}, v{mx}, v{tA}", [f"v{mx}", f"v{tA}"], [f"v{mx}"])
    p.valu(f"v_max_f32 v{tB}, v{V_MREF[r]}, v{mx}", [f"v{V_MREF[r]}", f"v{mx}"], [f"v{tB}"])
    p.valu(f"v_sub_f32 v{tC}, v{V_MREF[r]}, v{tB}", [f"v{V_MREF[r]}", f"v{tB}"], [f"v{tC}"])
    p.valu(f"v_mul_f32 v{tC}, s{S_C}, v{tC}", [f"s{S_C}", f"v{tC}"], [f"v{tC}"])
    p.trans(f"v_exp_f32 v{tC}, v{tC}", [f"v{tC}"], [f"v{tC}"])
    p.valu(f"v_mov_b32 v{V_MREF[r]}, v{tB}", [f"v{tB}"], [f"v{V_MREF[r]}"])
    p.valu(f"v_add_f32 v{V_THR[r]}, {f32hex(THR_RAW)}, v{tB}", [f"v{tB}"], [f"v{V_THR[r]}"])
    p.valu(f"v_mul_f32 v{V_NEGM[r]}, {f32hex(-C_SCALE)}, v{tB}", [f"v{tB}"], [f"v{V_NEGM[r]}"])
    p.salu(f"s_cmp_lg_u32 s{S_FIRST}, 0", [f"s{S_FIRST}"], ["scc"])
    p.branch(f"s_cbranch_scc1 RET_{tag}")
    p.nop(7)
    tmps = [V_TMP[5], V_TMP[6], V_TMP[7], V_TMP[8]]
    for i in range(8):
        for q in range(4):
            a = AO(i, r) + q
            t = tmps[q]
            p.valu(f"v_accvgpr_read_b32 v{t}, a{a}", [f"a{a}"], [f"v{t}"])
        p.nop(0)
        for q in range(4):
            t = tmps[q]
            p.valu(f"v_mul_f32 v{t}, v{t}, v{tC}", [f"v{t}", f"v{tC}"], [f"v{t}"])
        p.nop(0)
        for q in range(4):
            a = AO(i, r) + q
            t = tmps[q]
            p.valu(f"v_accvgpr_write_b32 a{a}, v{t}", [f"v{t}"], [f"a{a}"])
        p.nop(0)
    for q in range(4):
        v = VL(r) + q
        p.valu(f"v_mul_f32 v{v}, v{v}, v{tC}", [f"v{v}", f"v{tC}"], [f"v{v}"])
    p.nop(1)
    p.branch(f"s_branch RET_{tag}")


def stamp(p, slot):
    if not PROF:
        return
    r0 = 56 + 2 * slot
    p.add(Ins(f"s_memtime s[{r0}:{r0+1}]", "salu", [], [f"s{r0}", f"s{r0+1}"]))


def dump_stamps(p):
    if not PROF:
        return
    p.wait("s_waitcnt lgkmcnt(0)")
    stamp(p, 7)
    p.add(Ins("s_memrealtime s[74:75]", "salu", [], ["s74", "s75"]))
    p.wait("s_waitcnt lgkmcnt(0)")
    p.salu(f"s_lshl_b32 s{S_T0}, s2, 2", ["s2"], [f"s{S_T0}"])
    p.salu(f"s_add_u32 s{S_T0}, s{S_T0}, s{S_WAVE}", [f"s{S_T0}", f"s{S_WAVE}"], [f"s{S_T0}"])
    p.salu(f"s_lshl_b32 s{S_T0}, s{S_T0}, 7", [f"s{S_T0}"], [f"s{S_T0}"])
    p.salu(f"s_load_dwordx2 s[{S_WSP}:{S_WSP+1}], s[0:1], 40", ["s0", "s1"], [f"s{S_WSP}", f"s{S_WSP+1}"])
    p.wait("s_waitcnt lgkmcnt(0)")
    p.salu(f"s_mov_b32 s{SRD_WS}, s{S_WSP}", [f"s{S_WSP}"], [f"s{SRD_WS}"])
    p.salu(f"s_mov_b32 s{SRD_WS+1}, s{S_WSP+1}", [f"s{S_WSP+1}"], [f"s{SRD_WS+1}"])
    p.salu(f"s_mov_b32 s{SRD_WS+2}, 0x100000", [], [f"s{SRD_WS+2}"])
    p.salu(f"s_mov_b32 s{SRD_WS+3}, 0x00020000", [], [f"s{SRD_WS+3}"])
    t = V_E + 76
    for k in range(10):
        p.valu(f"v_mov_b32 v{t+2*k}, s{56+2*k}", [f"s{56+2*k}"], [f"v{t+2*k}"])
        p.valu(f"v_mov_b32 v{t+2*k+1}, s{57+2*k}", [f"s{57+2*k}"], [f"v{t+2*k+1}"])
    for k in range(5):
        p.vmem(f"buffer_store_dwordx4 v[{t+4*k}:{t+4*k+3}], off, s[{SRD_WS}:{SRD_WS+3}], s{S_T0} offset:{16*k}",
               regs("v", t + 4 * k, 4) + [f"s{S_T0}"], [])
    p.wait("s_waitcnt vmcnt(0)")


def build():
    p = Prog()
    slow_list = []

    p.salu("s_cmp_ge_u32 s2, 256", ["s2"], ["scc"])
    p.branch("s_cbranch_scc1 L_END")
    stamp(p, 0)
    if PROF:
        p.add(Ins("s_memrealtime s[72:73]", "salu", [], ["s72", "s73"]))
    p.salu("s_load_dwordx4 s[4:7], s[0:1], 0", ["s0", "s1"], regs("s", 4, 4))
    p.salu("s_load_dwordx4 s[8:11], s[0:1], 16", ["s0", "s1"], regs("s", 8, 4))
    p.valu(f"v_lshrrev_b32 v{V_TMP[0]}, 6, v0", ["v0"], [f"v{V_TMP[0]}"])
    p.valu(f"v_and_b32 v{V_TMP[1]}, 63, v0", ["v0"], [f"v{V_TMP[1]}"])
    p.valu(f"v_readfirstlane_b32 s{S_WAVE}, v{V_TMP[0]}", [f"v{V_TMP[0]}"], [f"s{S_WAVE}"])
    lane = V_TMP[1]
    n_, g_ = V_TMP[2], V_TMP[3]
    p.valu(f"v_and_b32 v{n_}, 15, v{lane}", [f"v{lane}"], [f"v{n_}"])
    p.valu(f"v_lshrrev_b32 v{g_}, 4, v{lane}", [f"v{lane}"], [f"v{g_}"])
    p.salu(f"s_and_b32 s{S_T0}, s2, 7", ["s2"], [f"s{S_T0}"])
    p.salu(f"s_lshl_b32 s{S_T0}, s{S_T0}, 3", [f"s{S_T0}"], [f"s{S_T0}"])
    p.salu(f"s_lshr_b32 s{S_T1}, s2, 5", ["s2"], [f"s{S_T1}"])
    p.salu(f"s_add_u32 s{S_T0}, s{S_T0}, s{S_T1}", [f"s{S_T0}", f"s{S_T1}"], [f"s{S_T0}"])
    p.salu(f"s_lshr_b32 s{S_T1}, s2, 3", ["s2"], [f"s{S_T1}"])
    p.salu(f"s_and_b32 s{S_T1}, s{S_T1}, 3", [f"s{S_T1}"], [f"s{S_T1}"])
    p.salu(f"s_lshl_b32 s{S_HEAD}, s{S_T0}, 2", [f"s{S_T0}"], [f"s{S_HEAD}"])
    p.salu(f"s_add_u32 s{S_HEAD}, s{S_HEAD}, s{S_T1}", [f"s{S_HEAD}", f"s{S_T1}"], [f"s{S_HEAD}"])
    p.salu(f"s_lshl_b32 s{S_LDSB}, s{S_WAVE}, 15", [f"s{S_WAVE}"], [f"s{S_LDSB}"])
    p.salu(f"s_lshl_b32 s{S_T2}, s{S_T0}, 18", [f"s{S_T0}"], [f"s{S_T2}"])
    p.salu(f"s_lshl_b32 s{S_T3}, s{S_WAVE}, 16", [f"s{S_WAVE}"], [f"s{S_T3}"])
    p.salu(f"s_add_u32 s{S_T2}, s{S_T2}, s{S_T3}", [f"s{S_T2}", f"s{S_T3}"], [f"s{S_T2}"])
    p.salu(f"s_mul_i32 s{S_T3}, s{S_HEAD}, 20480", [f"s{S_HEAD}"], [f"s{S_T3}"])
    p.wait("s_waitcnt lgkmcnt(0)")
    for (srd, ptr, off, size) in ((SRD_Q, S_Q, S_T3, 20480), (SRD_K, S_K, S_T2, 65536), (SRD_V, S_V, S_T2, 65536),
                                  (SRD_O, S_OUTP, S_T3, 20480)):
        p.salu(f"s_add_u32 s{srd}, s{ptr}, s{off}", [f"s{ptr}", f"s{off}"], [f"s{srd}", "scc"])
        p.salu(f"s_addc_u32 s{srd+1}, s{ptr+1}, 0", [f"s{ptr+1}", "scc"], [f"s{srd+1}"])
        p.salu(f"s_mov_b32 s{srd+2}, {size}", [], [f"s{srd+2}"])
        p.salu(f"s_mov_b32 s{srd+3}, 0x00020000", [], [f"s{srd+3}"])
    t0, t1, t2 = V_TMP[4], V_TMP[5], V_TMP[6]
    p.valu(f"v_lshlrev_b32 v{t0}, 8, v{n_}", [f"v{n_}"], [f"v{t0}"])
    p.valu(f"v_lshl_add_u32 v{V_QOFF}, v{g_}, 4, v{t0}", [f"v{g_}", f"v{t0}"], [f"v{V_QOFF}"])
    p.valu(f"v_xor_b32 v{t1}, v{n_}, v{g_}", [f"v{n_}", f"v{g_}"], [f"v{t1}"])
    p.valu(f"v_lshlrev_b32 v{t2}, 8, v{g_}", [f"v{g_}"], [f"v{t2}"])
    p.valu(f"v_lshl_add_u32 v{V_KD[0]}, v{t1}, 4, v{t2}", [f"v{t1}", f"v{t2}"], [f"v{V_KD[0]}"])
    for jj in range(1, 4):
        p.valu(f"v_xor_b32 v{V_KD[jj]}, {64*jj}, v{V_KD[0]}", [f"v{V_KD[0]}"], [f"v{V_KD[jj]}"])
    p.valu(f"v_lshl_add_u32 v{V_KR[0]}, v{t1}, 4, v{t0}", [f"v{t1}", f"v{t0}"], [f"v{V_KR[0]}"])
    p.valu(f"v_add_u32 v{V_KR[0]}, s{S_LDSB}, v{V_KR[0]}", [f"s{S_LDSB}", f"v{V_KR[0]}"], [f"v{V_KR[0]}"])
    for s in range(1, 4):
        p.valu(f"v_xor_b32 v{V_KR[s]}, {64*s}, v{V_KR[0]}", [f"v{V_KR[0]}"], [f"v{V_KR[s]}"])
    p.valu(f"v_bfe_u32 v{t0}, v{lane}, 1, 2", [f"v{lane}"], [f"v{t0}"])
    p.valu(f"v_lshlrev_b32 v{t0}, 8, v{t0}", [f"v{t0}"], [f"v{t0}"])
    p.valu(f"v_lshrrev_b32 v{t1}, 3, v{lane}", [f"v{lane}"], [f"v{t1}"])
    p.valu(f"v_lshl_add_u32 v{t0}, v{t1}, 5, v{t0}", [f"v{t1}", f"v{t0}"], [f"v{t0}"])
    p.valu(f"v_and_b32 v{t1}, 1, v{lane}", [f"v{lane}"], [f"v{t1}"])
    p.valu(f"v_lshl_add_u32 v{V_VD[0]}, v{t1}, 4, v{t0}", [f"v{t1}", f"v{t0}"], [f"v{V_VD[0]}"])
    p.valu(f"v_xor_b32 v{V_VD[1]}, 32, v{V_VD[0]}", [f"v{V_VD[0]}"], [f"v{V_VD[1]}"])
    p.valu(f"v_lshlrev_b32 v{t0}, 10, v{g_}", [f"v{g_}"], [f"v{t0}"])
    p.valu(f"v_and_b32 v{t1}, 1, v{g_}", [f"v{g_}"], [f"v{t1}"])
    p.valu(f"v_lshl_add_u32 v{t0}, v{t1}, 7, v{t0}", [f"v{t1}", f"v{t0}"], [f"v{t0}"])
    p.valu(f"v_bfe_u32 v{t1}, v{lane}, 2, 2", [f"v{lane}"], [f"v{t1}"])
    p.valu(f"v_lshl_add_u32 v{t0}, v{t1}, 5, v{t0}", [f"v{t1}", f"v{t0}"], [f"v{t0}"])
    p.valu(f"v_and_b32 v{t1}, 3, v{lane}", [f"v{lane}"], [f"v{t1}"])
    p.valu(f"v_lshl_add_u32 v{t0}, v{t1}, 3, v{t0}", [f"v{t1}", f"v{t0}"], [f"v{t0}"])
    p.valu(f"v_add_u32 v{V_VR[0]}, s{S_LDSB}, v{t0}", [f"s{S_LDSB}", f"v{t0}"], [f"v{V_VR[0]}"])
    p.valu(f"v_xor_b32 v{V_VR[1]}, 128, v{V_VR[0]}", [f"v{V_VR[0]}"], [f"v{V_VR[1]}"])
    p.valu(f"v_lshlrev_b32 v{V_LANE16}, 4, v{lane}", [f"v{lane}"], [f"v{V_LANE16}"])
    p.valu(f"v_lshlrev_b32 v{t0}, 8, v{n_}", [f"v{n_}"], [f"v{t0}"])
    p.valu(f"v_lshl_add_u32 v{V_OUT}, v{g_}, 3, v{t0}", [f"v{g_}", f"v{t0}"], [f"v{V_OUT}"])
    p.salu(f"s_lshr_b32 s{S_T1}, s{S_HEAD}, 2", [f"s{S_HEAD}"], [f"s{S_T1}"])
    p.salu(f"s_lshl_b32 s{S_T2}, s{S_WAVE}, 1", [f"s{S_WAVE}"], [f"s{S_T2}"])
    p.salu(f"s_add_u32 s{S_T1}, s{S_T1}, s{S_T2}", [f"s{S_T1}", f"s{S_T2}"], [f"s{S_T1}"])
    if DELTA:
        p.salu(f"s_and_b32 s{S_T2}, s{S_HEAD}, 3", [f"s{S_HEAD}"], [f"s{S_T2}"])
        p.salu(f"s_mul_i32 s{S_T2}, s{S_T2}, {DELTA}", [f"s{S_T2}"], [f"s{S_T2}"])
        p.salu(f"s_add_u32 s{S_T1}, s{S_T1}, s{S_T2}", [f"s{S_T1}", f"s{S_T2}"], [f"s{S_T1}"])
    p.salu(f"s_and_b32 s{S_T1}, s{S_T1}, {ROTMASK}", [f"s{S_T1}"], [f"s{S_T1}"])
    p.salu(f"s_lshl_b32 s{S_KOFFA}, s{S_T1}, 13", [f"s{S_T1}"], [f"s{S_KOFFA}"])
    p.salu(f"s_add_u32 s{S_KOFFB}, s{S_KOFFA}, 4096", [f"s{S_KOFFA}"], [f"s{S_KOFFB}"])
    p.salu(f"s_mov_b32 s{S_VOFFA}, s{S_KOFFA}", [f"s{S_KOFFA}"], [f"s{S_VOFFA}"])
    p.salu(f"s_mov_b32 s{S_VOFFB}, s{S_KOFFB}", [f"s{S_KOFFB}"], [f"s{S_VOFFB}"])
    p.salu(f"s_mov_b32 s{S_C}, {f32hex(C_SCALE)}", [], [f"s{S_C}"])
    p.salu(f"s_mov_b32 s{S_FIRST}, 1", [], [f"s{S_FIRST}"])
    p.salu(f"s_mov_b32 s{S_CNT}, 0", [], [f"s{S_CNT}"])
    for r in range(5):
        p.salu(f"s_mov_b32 s{S_T0}, {4096*r}", [], [f"s{S_T0}"]) if r > 0 else None
        for s in range(4):
            so = "0" if r == 0 else f"s{S_T0}"
            p.vmem(f"buffer_load_dwordx4 {ar(AQ(r, s), 4)}, v{V_QOFF}, s[{SRD_Q}:{SRD_Q+3}], {so} offen offset:{64*s} {NT}",
                   [f"v{V_QOFF}"] + ([] if r == 0 else [f"s{S_T0}"]), regs("a", AQ(r, s), 4))
    straight(p, k_dma(0))
    straight(p, v_dma(0))
    straight(p, k_dma(1))
    straight(p, v_dma(1))
    if PROF:
        stamp(p, 1)
        p.wait("s_waitcnt vmcnt(51)")
        stamp(p, 2)
        p.wait("s_waitcnt vmcnt(32)")
        stamp(p, 3)
    for a in range(160):
        p.valu(f"v_accvgpr_write_b32 a{a}, 0", [], [f"a{a}"])
    for v in range(V_L, V_L + 20):
        p.valu(f"v_mov_b32 v{v}, 0", [], [f"v{v}"])
    for v in range(V_VF, V_VF + 32):
        p.valu(f"v_mov_b32 v{v}, 0", [], [f"v{v}"])
    for v in range(V_P[0], V_P[0] + 8):
        p.valu(f"v_mov_b32 v{v}, 0", [], [f"v{v}"])
    for q in range(4):
        p.valu(f"v_mov_b32 v{V_ONES+q}, 0x3f803f80", [], [f"v{V_ONES+q}"])
    for r in range(5):
        p.valu(f"v_mov_b32 v{V_MREF[r]}, 0xff800000", [], [f"v{V_MREF[r]}"])
        p.valu(f"v_mov_b32 v{V_THR[r]}, 0xff800000", [], [f"v{V_THR[r]}"])
        p.valu(f"v_mov_b32 v{V_NEGM[r]}, 0", [], [f"v{V_NEGM[r]}"])
    p.wait("s_waitcnt vmcnt(24)")
    stamp(p, 4)
    for t in range(2):
        for s in range(4):
            p.add(k_frag_read(t, s, 0))
    p.wait("s_waitcnt lgkmcnt(0)")
    straight(p, k_dma(0))
    for m in qk_mfmas(0, 0):
        p.add(m)
    p.nop(7)

    def emit_block(pb, kdma, vdma, wait_v, wait_k, kread, last, tagp):
        for r in range(5):
            upar = (pb + r) & 1
            rn = (r + 1) % 5
            rp = (r - 1) % 5
            if last and r == 4:
                mf = pv_mfmas(upar ^ 1, rp)
                off = 0
            else:
                mf = qk_mfmas(upar ^ 1, rn) + pv_mfmas(upar ^ 1, rp)
                off = 8
            tag = f"{tagp}_{r}"
            slow_list.append((r, tag))
            va = sm_valu(upar, upar, r, tag)
            pre = []
            attach = {}
            if last and r == 4:
                pre.append(Ins("s_nop 1", "nop", slots=2))
            if r == 3 and kread:
                pre.append(Ins(f"s_waitcnt vmcnt({wait_k})", "wait"))
                k = 0
                for t in range(2):
                    for s_ in range(4):
                        attach[k] = [k_frag_read(t, s_, pb ^ 1)]
                        k += 1
            elif r == 4 and kread:
                pre.append(Ins("s_waitcnt lgkmcnt(0)", "wait"))
                if kdma:
                    d = k_dma(pb ^ 1)
                    attach[0] = [d[0]]
                    for q in range(4):
                        attach[1 + q] = [d[1 + q]]
                    attach[5] = [d[5]]
                    for q in range(4):
                        attach[6 + q] = [d[6 + q]]
                    attach[10] = [d[10], d[11], d[12]]
            elif r == 0:
                pre.append(Ins(f"s_waitcnt vmcnt({wait_v})", "wait"))
                for i in range(8):
                    attach[8 + i] = [v_frag_read(i, 0, pb), v_frag_read(i, 1, pb)]
            elif r == 1:
                pre.append(Ins("s_waitcnt lgkmcnt(0)", "wait"))
                if vdma:
                    d = v_dma(pb)
                    attach[0] = [d[0]]
                    for q in range(4):
                        attach[1 + q] = [d[1 + q]]
                    attach[5] = [d[5]]
                    for q in range(4):
                        attach[6 + q] = [d[6 + q]]
                    attach[10] = [d[10], d[11], d[12]]
            merge_step(p, mf, va, pre=pre, attach=attach)

    p.label("L_LOOP")
    for pb in range(2):
        emit_block(pb, True, True, 24, 24, True, False, f"{pb}")
        if pb == 0:
            p.salu(f"s_mov_b32 s{S_FIRST}, 0", [], [f"s{S_FIRST}"])
    p.salu(f"s_add_u32 s{S_CNT}, s{S_CNT}, 1", [f"s{S_CNT}"], [f"s{S_CNT}", "scc"])
    p.salu(f"s_cmp_lt_u32 s{S_CNT}, {(NBLK-2)//2}", [f"s{S_CNT}"], ["scc"])
    p.branch("s_cbranch_scc1 L_LOOP")
    stamp(p, 5)
    emit_block(0, False, False, 16, 8, True, False, "6")
    emit_block(1, False, False, 0, 0, False, True, "7")

    p.nop(1)
    for m in pv_mfmas(1, 4):
        p.add(m)

    epilogue(p)
    p.label("L_END")
    p.add(Ins("s_endpgm", "branch"))
    for (r, tag) in slow_list:
        slow_path(p, r, tag)
    return p


def epilogue(p):
    E = V_E
    p.wait("s_waitcnt vmcnt(0)")
    p.nop(7)
    p.nop(7)
    t0, t1 = V_TMP[0], V_TMP[1]
    p.valu(f"v_and_b32 v{t0}, 15, v0", ["v0"], [f"v{t0}"])
    p.salu(f"s_mul_i32 s{S_T0}, s{S_WAVE}, 640", [f"s{S_WAVE}"], [f"s{S_T0}"])
    p.salu(f"s_add_u32 s{S_T0}, s{S_T0}, {LDS_ML}", [f"s{S_T0}"], [f"s{S_T0}"])
    p.valu(f"v_lshl_add_u32 v{t1}, v{t0}, 3, s{S_T0}", [f"v{t0}", f"s{S_T0}"], [f"v{t1}"])
    p.valu(f"v_lshlrev_b32 v{t0}, 3, v{t0}", [f"v{t0}"], [f"v{t0}"])
    p.valu(f"v_add_u32 v{t0}, {LDS_ML}, v{t0}", [f"v{t0}"], [f"v{t0}"])
    for r in range(5):
        p.ds(f"ds_write2_b32 v{t1}, v{V_MREF[r]}, v{VL(r)} offset0:{32*r} offset1:{32*r+1}",
             [f"v{t1}", f"v{V_MREF[r]}", f"v{VL(r)}"], [])
    p.salu(f"s_cmp_eq_u32 s{S_WAVE}, 1", [f"s{S_WAVE}"], ["scc"])
    p.branch("s_cbranch_scc1 L_EPI1")
    p.salu(f"s_cmp_eq_u32 s{S_WAVE}, 2", [f"s{S_WAVE}"], ["scc"])
    p.branch("s_cbranch_scc1 L_EPI2")
    p.salu(f"s_cmp_eq_u32 s{S_WAVE}, 3", [f"s{S_WAVE}"], ["scc"])
    p.branch("s_cbranch_scc1 L_EPI3")
    for w in range(4):
        p.label(f"L_EPI{w}")
        epilogue_wave(p, w)
        if w < 3:
            p.branch("s_branch L_END")


def epilogue_wave(p, w):
    E = V_E
    vw = E
    p.valu(f"v_add_u32 v{vw}, {w*LDS_WAVE}, v{V_LANE16}", [f"v{V_LANE16}"], [f"v{vw}"])
    for k in range(3):
        wd = (w + 1 + k) & 3
        for ti in range(10):
            i = 2 * wd + (ti // 5)
            r = ti % 5
            off = k * 10240 + ti * 1024
            a = AO(i, r)
            p.ds(f"ds_write_b128 v{vw}, {ar(a, 4)} offset:{off}", [f"v{vw}"] + regs("a", a, 4), [])
    p.wait("s_waitcnt lgkmcnt(0)")
    p.add(Ins("s_barrier", "salu"))
    stamp(p, 6)
    n8 = V_TMP[0]
    MLB = E + 2
    for ws in range(4):
        for r in range(5):
            d = MLB + 2 * (ws * 5 + r)
            p.ds(f"ds_read_b64 {vr(d, 2)}, v{n8} offset:{ws*640 + r*128}", [f"v{n8}"], regs("v", d, 2))
    p.wait("s_waitcnt lgkmcnt(0)")
    FB = MLB + 40
    ta, tb = V_TMP[2], V_TMP[3]
    for r in range(5):
        m = [MLB + 2 * (ws * 5 + r) for ws in range(4)]
        l = [x + 1 for x in m]
        f = [FB + ws * 5 + r for ws in range(4)]
        p.valu(f"v_max3_f32 v{ta}, v{m[0]}, v{m[1]}, v{m[2]}", [f"v{m[0]}", f"v{m[1]}", f"v{m[2]}"], [f"v{ta}"])
        p.valu(f"v_max_f32 v{ta}, v{ta}, v{m[3]}", [f"v{ta}", f"v{m[3]}"], [f"v{ta}"])
        for ws in range(4):
            p.valu(f"v_sub_f32 v{f[ws]}, v{m[ws]}, v{ta}", [f"v{m[ws]}", f"v{ta}"], [f"v{f[ws]}"])
        for ws in range(4):
            p.valu(f"v_mul_f32 v{f[ws]}, s{S_C}, v{f[ws]}", [f"s{S_C}", f"v{f[ws]}"], [f"v{f[ws]}"])
        for ws in range(4):
            p.trans(f"v_exp_f32 v{f[ws]}, v{f[ws]}", [f"v{f[ws]}"], [f"v{f[ws]}"])
        p.nop(0)
        p.valu(f"v_mul_f32 v{tb}, v{f[0]}, v{l[0]}", [f"v{f[0]}", f"v{l[0]}"], [f"v{tb}"])
        for ws in range(1, 4):
            p.valu(f"v_fmac_f32 v{tb}, v{f[ws]}, v{l[ws]}", [f"v{tb}", f"v{f[ws]}", f"v{l[ws]}"], [f"v{tb}"])
        p.trans(f"v_rcp_f32 v{tb}, v{tb}", [f"v{tb}"], [f"v{tb}"])
        p.nop(0)
        for ws in range(4):
            p.valu(f"v_mul_f32 v{f[ws]}, v{f[ws]}, v{tb}", [f"v{f[ws]}", f"v{tb}"], [f"v{f[ws]}"])
    RB = FB + 20
    ACC = RB + 12
    PK = ACC + 4
    if PK % 2:
        PK += 1
    srcs = [ws for ws in range(4) if ws != w]
    RA = PK + 2
    for q, ws in enumerate(srcs):
        k = (w - ws - 1) & 3
        p.valu(f"v_add_u32 v{RA+q}, {ws*LDS_WAVE + k*10240}, v{V_LANE16}", [f"v{V_LANE16}"], [f"v{RA+q}"])
    for ti in range(10):
        i = 2 * w + (ti // 5)
        r = ti % 5
        for q, ws in enumerate(srcs):
            d = RB + 4 * q
            p.ds(f"ds_read_b128 {vr(d, 4)}, v{RA+q} offset:{ti*1024}", [f"v{RA+q}"], regs("v", d, 4))
        a = AO(i, r)
        for e in range(4):
            p.valu(f"v_accvgpr_read_b32 v{ACC+e}, a{a+e}", [f"a{a+e}"], [f"v{ACC+e}"])
        p.nop(0)
        fw = FB + w * 5 + r
        for e in range(4):
            p.valu(f"v_mul_f32 v{ACC+e}, v{ACC+e}, v{fw}", [f"v{ACC+e}", f"v{fw}"], [f"v{ACC+e}"])
        p.wait("s_waitcnt lgkmcnt(0)")
        for q, ws in enumerate(srcs):
            f = FB + ws * 5 + r
            for e in range(4):
                s_ = RB + 4 * q + e
                p.valu(f"v_fmac_f32 v{ACC+e}, v{s_}, v{f}", [f"v{ACC+e}", f"v{s_}", f"v{f}"], [f"v{ACC+e}"])
        p.valu(f"v_cvt_pk_bf16_f32 v{PK}, v{ACC}, v{ACC+1}", [f"v{ACC}", f"v{ACC+1}"], [f"v{PK}"])
        p.valu(f"v_cvt_pk_bf16_f32 v{PK+1}, v{ACC+2}, v{ACC+3}", [f"v{ACC+2}", f"v{ACC+3}"], [f"v{PK+1}"])
        if r == 0:
            so = "0"
        else:
            p.salu(f"s_mov_b32 s{S_T0}, {4096*r}", [], [f"s{S_T0}"])
            so = f"s{S_T0}"
        p.vmem(f"buffer_store_dwordx2 {vr(PK, 2)}, v{V_OUT}, s[{SRD_O}:{SRD_O+3}], {so} offen offset:{32*i}",
               regs("v", PK, 2) + [f"v{V_OUT}"], [])
        p.nop(1)
    p.wait("s_waitcnt vmcnt(0)")
    dump_stamps(p)


def check_hazards(ins):
    errs = []
    seq = [x for x in ins if x.kind not in ("label",)]
    n = len(seq)

    def dist_states(i, j):
        d = 0
        for k in range(i + 1, j):
            x = seq[k]
            d += x.slots if x.kind == "nop" else 1
        return d

    for j, y in enumerate(seq):
        for i in range(max(0, j - 24), j):
            x = seq[i]
            d = None
            if x.kind == "mfma":
                D = set(x.wr)
                if y.kind in ("valu", "trans", "ds", "vmem"):
                    if D & (set(y.rd) | set(y.wr)):
                        d = dist_states(i, j)
                        if d < 8:
                            errs.append(f"MFMA D->{y.kind} dist {d}: {x.text} | {y.text}")
                if y.kind == "mfma":
                    ab = set(y.rd) - set(y.srcc)
                    if D & ab:
                        d = dist_states(i, j)
                        if d < 8:
                            errs.append(f"MFMA D->MFMA AB dist {d}: {x.text} | {y.text}")
                    if (D & set(y.srcc)) and set(y.srcc) != D:
                        errs.append(f"MFMA D->partial SrcC: {x.text} | {y.text}")
                if y.kind in ("valu", "trans") and (set(x.srcc) & set(y.wr)):
                    d = dist_states(i, j)
                    if d < 3:
                        errs.append(f"MFMA SrcC WAR dist {d}: {x.text} | {y.text}")
            if x.kind in ("valu", "trans"):
                W = set(x.wr)
                if y.kind == "mfma" and (W & set(y.rd)):
                    d = dist_states(i, j)
                    if d < 2:
                        errs.append(f"VALU->MFMA dist {d}: {x.text} | {y.text}")
                if "permlane" in y.text and (W & set(y.rd)):
                    d = dist_states(i, j)
                    if d < 2:
                        errs.append(f"VALU->permlane dist {d}: {x.text} | {y.text}")
                if "readfirstlane" in y.text and (W & set(y.rd)):
                    d = dist_states(i, j)
                    if d < 1:
                        errs.append(f"VALU->readfirstlane dist {d}: {x.text} | {y.text}")
                sg = {r_ for r_ in W if r_.startswith("s") or r_ == "vcc"}
                if sg and y.kind in ("valu", "trans") and (sg & set(y.rd)):
                    d = dist_states(i, j)
                    if d < 2:
                        errs.append(f"VALU sgpr->VALU dist {d}: {x.text} | {y.text}")
                if sg and y.kind == "vmem" and (sg & set(y.rd)):
                    d = dist_states(i, j)
                    if d < 5:
                        errs.append(f"VALU sgpr->VMEM dist {d}: {x.text} | {y.text}")
            if x.kind == "trans" and y.kind == "valu" and (set(x.wr) & set(y.rd)):
                d = dist_states(i, j)
                if d < 1:
                    errs.append(f"trans->VALU dist {d}: {x.text} | {y.text}")
            if x.kind == "salu" and "m0" in x.wr and y.kind == "vmem" and "m0" in y.rd:
                d = dist_states(i, j)
                if d < 1:
                    errs.append(f"m0->DMA dist {d}: {x.text} | {y.text}")
            if x.kind == "vmem" and "store" in x.text and y.kind in ("valu", "trans"):
                data = {r_ for r_ in x.rd if r_.startswith("v")}
                if data & set(y.wr):
                    d = dist_states(i, j)
                    if d < 2:
                        errs.append(f"store data WAR dist {d}: {x.text} | {y.text}")
    return errs


def main(out_path):
    p = build()
    ins = p.ins
    li = next(k for k, x in enumerate(ins) if x.text == "L_LOOP:")
    le = next(k for k, x in enumerate(ins) if x.text == "s_cbranch_scc1 L_LOOP")
    endk = next(k for k, x in enumerate(ins) if x.text == "L_END:")
    body = ins[li:le + 1]
    lin = ins[:le + 1] + body + ins[le + 1:endk]
    errs = check_hazards(lin)
    errs += check_hazards(ins[endk:])
    if errs:
        print("HAZARDS:\n" + "\n".join(errs[:50]), file=sys.stderr)
        sys.exit(1)
    L = []
    L.append(f"; @launch grid=(256,1,1) block=(256,1,1) lds={LDS_TOTAL}")
    L.append('.amdgcn_target "amdgcn-amd-amdhsa--gfx950"')
    L.append(".text")
    L.append(".globl standalone__gqa_softmax__near_ridge_kernel")
    L.append(".p2align 8")
    L.append(".type standalone__gqa_softmax__near_ridge_kernel,@function")
    L.append("standalone__gqa_softmax__near_ridge_kernel:")
    for x in ins:
        if x.kind == "label":
            L.append(x.text)
        else:
            L.append("    " + x.text)
    L.append('.section .rodata,"a"')
    L.append(".p2align 6")
    L.append(".amdhsa_kernel standalone__gqa_softmax__near_ridge_kernel")
    L.append("  .amdhsa_next_free_vgpr 496")
    L.append(f"  .amdhsa_next_free_sgpr {NUM_SGPR}")
    L.append("  .amdhsa_accum_offset 256")
    L.append("  .amdhsa_group_segment_fixed_size 0")
    L.append("  .amdhsa_kernarg_size 48")
    L.append("  .amdhsa_user_sgpr_count 2")
    L.append("  .amdhsa_user_sgpr_kernarg_segment_ptr 1")
    L.append("  .amdhsa_system_sgpr_workgroup_id_x 1")
    L.append(".end_amdhsa_kernel")
    open(out_path, "w").write("\n".join(L) + "\n")
    nm = sum(1 for x in ins if x.kind == "mfma")
    print(f"wrote {out_path}: {len(ins)} instrs, {nm} mfma")


if __name__ == "__main__":
    if len(sys.argv) > 2 and sys.argv[2] == "prof":
        PROF = True
    if len(sys.argv) > 3:
        DELTA = int(sys.argv[3])
    main(sys.argv[1] if len(sys.argv) > 1 else "standalone__gqa_softmax__near_ridge.s")
```

```python
import sys
import numpy as np

C_SCALE = np.float32(1.4426950408889634 / np.sqrt(128.0))
T_LOG2 = 8.0
THR_RAW = np.float32(T_LOG2 / float(C_SCALE))


def f32hex(x):
    return "0x%08x" % int(np.float32(x).view(np.uint32))


V_TID = 0
V_TMP = [1, 2, 3, 4, 5, 6, 7, 8, 9]
V_KD = [10, 11, 12, 13]
V_VD = [14, 15]
V_KR = [16, 17, 18, 19]
V_VR = [20, 21]
V_QOFF = 22
V_LANE16 = 23
V_OUT = 24
V_MREF = [25, 26, 27, 28, 29]
V_THR = [30, 31, 32, 33, 34]
V_NEGM = [35, 36, 37, 38, 39]
V_ONES = 40
V_S = [44, 52]
V_P = [60, 64]
V_L = 68
V_KF = 88
V_VF = 120
V_E = 152

A_O = 0
A_Q = 160

S_Q, S_K, S_V, S_OUTP = 4, 6, 8, 10
SRD_Q, SRD_K, SRD_V, SRD_O = 12, 16, 20, 24
S_WAVE = 28
S_T0 = 29
S_LDSB = 30
S_KOFFA, S_KOFFB = 31, 32
S_VOFFA, S_VOFFB = 33, 34
S_CNT = 35
S_C = 36
S_FIRST = 37
S_T1 = 38
S_T2 = 39
S_T3 = 40
S_HEAD = 41
NUM_SGPR = 80

LDS_WAVE = 32768
LDS_ML = 4 * LDS_WAVE
LDS_Q = LDS_ML + 4 * 5 * 16 * 8
LDS_TOTAL = LDS_Q + 20480

NBLK = 8
DELTA = 0
NT = 'nt'
ROTMASK = 7
PROF = False
S_TS = 42
S_WSP = 44
SRD_WS = 48


def vr(b, n=1):
    return f"v{b}" if n == 1 else f"v[{b}:{b+n-1}]"


def ar(b, n=1):
    return f"a{b}" if n == 1 else f"a[{b}:{b+n-1}]"


def regs(prefix, b, n):
    return [f"{prefix}{b+i}" for i in range(n)]


class Ins:
    __slots__ = ("text", "kind", "rd", "wr", "srcc", "slots")

    def __init__(self, text, kind, rd=(), wr=(), srcc=(), slots=1):
        self.text = text
        self.kind = kind
        self.rd = list(rd)
        self.wr = list(wr)
        self.srcc = list(srcc)
        self.slots = slots


class Prog:
    def __init__(self):
        self.ins = []

    def add(self, i):
        self.ins.append(i)
        return i

    def salu(self, text, rd=(), wr=()):
        return self.add(Ins(text, "salu", rd, wr))

    def valu(self, text, rd=(), wr=()):
        return self.add(Ins(text, "valu", rd, wr))

    def trans(self, text, rd=(), wr=()):
        return self.add(Ins(text, "trans", rd, wr, slots=2))

    def wait(self, text):
        return self.add(Ins(text, "wait"))

    def nop(self, n):
        return self.add(Ins(f"s_nop {n}", "nop", slots=n + 1))

    def label(self, name):
        return self.add(Ins(f"{name}:", "label"))

    def branch(self, text):
        return self.add(Ins(text, "branch"))

    def ds(self, text, rd=(), wr=()):
        return self.add(Ins(text, "ds", rd, wr))

    def vmem(self, text, rd=(), wr=()):
        return self.add(Ins(text, "vmem", rd, wr))


def mfma(dst_pref, dst, a_pref, a, b_pref, b, c_zero=False):
    d = f"{dst_pref}[{dst}:{dst+3}]"
    aa = f"{a_pref}[{a}:{a+3}]"
    bb = f"{b_pref}[{b}:{b+3}]"
    cc = "0" if c_zero else d
    rd = regs(a_pref, a, 4) + regs(b_pref, b, 4)
    srcc = [] if c_zero else regs(dst_pref, dst, 4)
    return Ins(f"v_mfma_f32_16x16x32_bf16 {d}, {aa}, {bb}, {cc}", "mfma", rd + srcc, regs(dst_pref, dst, 4),
               srcc=srcc, slots=2)


def KF(t, s):
    return V_KF + 4 * (4 * t + s)


def VF(i):
    return V_VF + 4 * i


def AO(i, r):
    return A_O + 4 * (8 * r + i)


def AQ(r, s):
    return A_Q + 4 * (4 * r + s)


def VL(r):
    return V_L + 4 * r


def dma_group(p, srd, vdma_regs, soff_sgpr, m0_imm, jlist):
    out = []
    out.append(Ins(f"s_add_u32 m0, s{S_LDSB}, {m0_imm}", "salu", [f"s{S_LDSB}"], ["m0"]))
    for q, j in enumerate(jlist):
        vo = vdma_regs[j % len(vdma_regs)]
        out.append(Ins(f"buffer_load_dwordx4 v{vo}, s[{srd}:{srd+3}], s{soff_sgpr} offen offset:{q*1024} {NT} lds",
                       "vmem", [f"v{vo}", f"s{soff_sgpr}", "m0"], []))
    return out


def k_dma(slab):
    base = slab * 8192
    g0 = dma_group(None, SRD_K, V_KD, S_KOFFA, base, [0, 1, 2, 3])
    g1 = dma_group(None, SRD_K, V_KD, S_KOFFB, base + 4096, [4, 5, 6, 7])
    upd = [Ins(f"s_add_u32 s{S_KOFFB}, s{S_KOFFA}, 8192", "salu", [f"s{S_KOFFA}"], [f"s{S_KOFFB}"]),
           Ins(f"s_and_b32 s{S_KOFFA}, s{S_KOFFB}, 0xffff", "salu", [f"s{S_KOFFB}"], [f"s{S_KOFFA}"]),
           Ins(f"s_add_u32 s{S_KOFFB}, s{S_KOFFA}, 4096", "salu", [f"s{S_KOFFA}"], [f"s{S_KOFFB}"])]
    return g0 + g1 + upd


def v_dma(slab):
    base = 16384 + slab * 8192
    g0 = dma_group(None, SRD_V, V_VD, S_VOFFA, base, [0, 1, 2, 3])
    g1 = dma_group(None, SRD_V, V_VD, S_VOFFB, base + 4096, [4, 5, 6, 7])
    upd = [Ins(f"s_add_u32 s{S_VOFFB}, s{S_VOFFA}, 8192", "salu", [f"s{S_VOFFA}"], [f"s{S_VOFFB}"]),
           Ins(f"s_and_b32 s{S_VOFFA}, s{S_VOFFB}, 0xffff", "salu", [f"s{S_VOFFB}"], [f"s{S_VOFFA}"]),
           Ins(f"s_add_u32 s{S_VOFFB}, s{S_VOFFA}, 4096", "salu", [f"s{S_VOFFA}"], [f"s{S_VOFFB}"])]
    return g0 + g1 + upd


def straight(p, lst):
    for x in lst:
        p.add(x)
        if "m0" in x.wr:
            p.nop(0)


def k_frag_read(t, s, slab):
    off = slab * 8192 + t * 4096
    return Ins(f"ds_read_b128 {vr(KF(t, s), 4)}, v{V_KR[s]} offset:{off}", "ds", [f"v{V_KR[s]}"],
               regs("v", KF(t, s), 4))


def v_frag_read(i, h, slab):
    off = 16384 + slab * 8192 + h * 4096 + (i >> 1) * 256
    d = VF(i) + 2 * h
    return Ins(f"ds_read_b64_tr_b16 {vr(d, 2)}, v{V_VR[i & 1]} offset:{off}", "ds", [f"v{V_VR[i & 1]}"],
               regs("v", d, 2))


def qk_mfmas(sbuf, rnext):
    out = []
    for t in range(2):
        for s in range(4):
            out.append(mfma("v", V_S[sbuf] + 4 * t, "v", KF(t, s), "a", AQ(rnext, s), c_zero=(s == 0)))
    return out


def pv_mfmas(pbuf, rprev):
    out = []
    for i in range(8):
        out.append(mfma("a", AO(i, rprev), "v", VF(i), "v", V_P[pbuf]))
    out.append(mfma("v", VL(rprev), "v", V_ONES, "v", V_P[pbuf]))
    return out


def sm_valu(sbuf, pbuf, r, tag):
    S = [V_S[sbuf] + k for k in range(8)]
    mx0, mx1 = V_TMP[0], V_TMP[1]
    out = []
    out.append(Ins(f"v_max3_f32 v{mx0}, v{S[0]}, v{S[1]}, v{S[2]}", "valu", [f"v{S[0]}", f"v{S[1]}", f"v{S[2]}"],
                   [f"v{mx0}"]))
    out.append(Ins(f"v_max3_f32 v{mx1}, v{S[3]}, v{S[4]}, v{S[5]}", "valu", [f"v{S[3]}", f"v{S[4]}", f"v{S[5]}"],
                   [f"v{mx1}"]))
    out.append(Ins(f"v_max3_f32 v{mx0}, v{S[6]}, v{S[7]}, v{mx0}", "valu", [f"v{S[6]}", f"v{S[7]}", f"v{mx0}"],
                   [f"v{mx0}"]))
    out.append(Ins(f"v_max_f32 v{mx0}, v{mx0}, v{mx1}", "valu", [f"v{mx0}", f"v{mx1}"], [f"v{mx0}"]))
    out.append(Ins(f"v_cmp_gt_f32 vcc, v{mx0}, v{V_THR[r]}", "valu", [f"v{mx0}", f"v{V_THR[r]}"], ["vcc"]))
    out.append(Ins(f"s_cbranch_vccnz SLOW_{tag}", "branch", ["vcc"], []))
    out.append(Ins(f"RET_{tag}:", "label"))
    for k in range(8):
        out.append(Ins(f"v_fma_f32 v{S[k]}, v{S[k]}, s{S_C}, v{V_NEGM[r]}", "valu",
                       [f"v{S[k]}", f"s{S_C}", f"v{V_NEGM[r]}"], [f"v{S[k]}"]))
    for k in range(8):
        out.append(Ins(f"v_exp_f32 v{S[k]}, v{S[k]}", "trans", [f"v{S[k]}"], [f"v{S[k]}"], slots=2))
    for q in range(4):
        d = V_P[pbuf] + q
        out.append(Ins(f"v_cvt_pk_bf16_f32 v{d}, v{S[2*q]}, v{S[2*q+1]}", "valu",
                       [f"v{S[2*q]}", f"v{S[2*q+1]}"], [f"v{d}"]))
    return out


def merge_step(p, mf, valu, pre=(), attach=None, budget=2):
    attach = attach or {}
    for x in pre:
        p.add(x)
    vi = 0
    for k, m in enumerate(mf):
        p.add(m)
        for x in attach.get(k, []):
            p.add(x)
        used = 0
        while vi < len(valu):
            nxt = valu[vi]
            if nxt.kind == "label":
                p.add(nxt)
                vi += 1
                continue
            if used + nxt.slots > budget and used > 0:
                break
            p.add(nxt)
            used += nxt.slots
            vi += 1
    while vi < len(valu):
        p.add(valu[vi])
        vi += 1


def slow_path(p, r, tag):
    mx, tA, tB, tC = V_TMP[0], V_TMP[2], V_TMP[3], V_TMP[4]
    p.label(f"SLOW_{tag}")
    p.valu(f"v_mov_b32 v{tA}, v{mx}", [f"v{mx}"], [f"v{tA}"])
    p.nop(1)
    p.valu(f"v_permlane16_swap_b32 v{mx}, v{tA}", [f"v{mx}", f"v{tA}"], [f"v{mx}", f"v{tA}"])
    p.nop(0)
    p.valu(f"v_max_f32 v{mx}, v{mx}, v{tA}", [f"v{mx}", f"v{tA}"], [f"v{mx}"])
    p.valu(f"v_mov_b32 v{tA}, v{mx}", [f"v{mx}"], [f"v{tA}"])
    p.nop(1)
    p.valu(f"v_permlane32_swap_b32 v{mx}, v{tA}", [f"v{mx}", f"v{tA}"], [f"v{mx}", f"v{tA}"])
    p.nop(0)
    p.valu(f"v_max_f32 v{mx}, v{mx}, v{tA}", [f"v{mx}", f"v{tA}"], [f"v{mx}"])
    p.valu(f"v_max_f32 v{tB}, v{V_MREF[r]}, v{mx}", [f"v{V_MREF[r]}", f"v{mx}"], [f"v{tB}"])
    p.valu(f"v_sub_f32 v{tC}, v{V_MREF[r]}, v{tB}", [f"v{V_MREF[r]}", f"v{tB}"], [f"v{tC}"])
    p.valu(f"v_mul_f32 v{tC}, s{S_C}, v{tC}", [f"s{S_C}", f"v{tC}"], [f"v{tC}"])
    p.trans(f"v_exp_f32 v{tC}, v{tC}", [f"v{tC}"], [f"v{tC}"])
    p.valu(f"v_mov_b32 v{V_MREF[r]}, v{tB}", [f"v{tB}"], [f"v{V_MREF[r]}"])
    p.valu(f"v_add_f32 v{V_THR[r]}, {f32hex(THR_RAW)}, v{tB}", [f"v{tB}"], [f"v{V_THR[r]}"])
    p.valu(f"v_mul_f32 v{V_NEGM[r]}, {f32hex(-C_SCALE)}, v{tB}", [f"v{tB}"], [f"v{V_NEGM[r]}"])
    p.salu(f"s_cmp_lg_u32 s{S_FIRST}, 0", [f"s{S_FIRST}"], ["scc"])
    p.branch(f"s_cbranch_scc1 RET_{tag}")
    p.nop(7)
    tmps = [V_TMP[5], V_TMP[6], V_TMP[7], V_TMP[8]]
    for i in range(8):
        for q in range(4):
            a = AO(i, r) + q
            t = tmps[q]
            p.valu(f"v_accvgpr_read_b32 v{t}, a{a}", [f"a{a}"], [f"v{t}"])
        p.nop(0)
        for q in range(4):
            t = tmps[q]
            p.valu(f"v_mul_f32 v{t}, v{t}, v{tC}", [f"v{t}", f"v{tC}"], [f"v{t}"])
        p.nop(0)
        for q in range(4):
            a = AO(i, r) + q
            t = tmps[q]
            p.valu(f"v_accvgpr_write_b32 a{a}, v{t}", [f"v{t}"], [f"a{a}"])
        p.nop(0)
    for q in range(4):
        v = VL(r) + q
        p.valu(f"v_mul_f32 v{v}, v{v}, v{tC}", [f"v{v}", f"v{tC}"], [f"v{v}"])
    p.nop(1)
    p.branch(f"s_branch RET_{tag}")


def stamp(p, slot):
    if not PROF:
        return
    r0 = 56 + 2 * slot
    p.add(Ins(f"s_memtime s[{r0}:{r0+1}]", "salu", [], [f"s{r0}", f"s{r0+1}"]))


def dump_stamps(p):
    if not PROF:
        return
    p.wait("s_waitcnt lgkmcnt(0)")
    stamp(p, 7)
    p.add(Ins("s_memrealtime s[74:75]", "salu", [], ["s74", "s75"]))
    p.wait("s_waitcnt lgkmcnt(0)")
    p.salu(f"s_lshl_b32 s{S_T0}, s2, 2", ["s2"], [f"s{S_T0}"])
    p.salu(f"s_add_u32 s{S_T0}, s{S_T0}, s{S_WAVE}", [f"s{S_T0}", f"s{S_WAVE}"], [f"s{S_T0}"])
    p.salu(f"s_lshl_b32 s{S_T0}, s{S_T0}, 7", [f"s{S_T0}"], [f"s{S_T0}"])
    p.salu(f"s_load_dwordx2 s[{S_WSP}:{S_WSP+1}], s[0:1], 40", ["s0", "s1"], [f"s{S_WSP}", f"s{S_WSP+1}"])
    p.wait("s_waitcnt lgkmcnt(0)")
    p.salu(f"s_mov_b32 s{SRD_WS}, s{S_WSP}", [f"s{S_WSP}"], [f"s{SRD_WS}"])
    p.salu(f"s_mov_b32 s{SRD_WS+1}, s{S_WSP+1}", [f"s{S_WSP+1}"], [f"s{SRD_WS+1}"])
    p.salu(f"s_mov_b32 s{SRD_WS+2}, 0x100000", [], [f"s{SRD_WS+2}"])
    p.salu(f"s_mov_b32 s{SRD_WS+3}, 0x00020000", [], [f"s{SRD_WS+3}"])
    t = V_E + 76
    for k in range(10):
        p.valu(f"v_mov_b32 v{t+2*k}, s{56+2*k}", [f"s{56+2*k}"], [f"v{t+2*k}"])
        p.valu(f"v_mov_b32 v{t+2*k+1}, s{57+2*k}", [f"s{57+2*k}"], [f"v{t+2*k+1}"])
    for k in range(5):
        p.vmem(f"buffer_store_dwordx4 v[{t+4*k}:{t+4*k+3}], off, s[{SRD_WS}:{SRD_WS+3}], s{S_T0} offset:{16*k}",
               regs("v", t + 4 * k, 4) + [f"s{S_T0}"], [])
    p.wait("s_waitcnt vmcnt(0)")


def build():
    p = Prog()
    slow_list = []

    p.salu("s_cmp_ge_u32 s2, 256", ["s2"], ["scc"])
    p.branch("s_cbranch_scc1 L_END")
    stamp(p, 0)
    if PROF:
        p.add(Ins("s_memrealtime s[72:73]", "salu", [], ["s72", "s73"]))
    p.salu("s_load_dwordx4 s[4:7], s[0:1], 0", ["s0", "s1"], regs("s", 4, 4))
    p.salu("s_load_dwordx4 s[8:11], s[0:1], 16", ["s0", "s1"], regs("s", 8, 4))
    p.valu(f"v_lshrrev_b32 v{V_TMP[0]}, 6, v0", ["v0"], [f"v{V_TMP[0]}"])
    p.valu(f"v_and_b32 v{V_TMP[1]}, 63, v0", ["v0"], [f"v{V_TMP[1]}"])
    p.valu(f"v_readfirstlane_b32 s{S_WAVE}, v{V_TMP[0]}", [f"v{V_TMP[0]}"], [f"s{S_WAVE}"])
    lane = V_TMP[1]
    n_, g_ = V_TMP[2], V_TMP[3]
    p.valu(f"v_and_b32 v{n_}, 15, v{lane}", [f"v{lane}"], [f"v{n_}"])
    p.valu(f"v_lshrrev_b32 v{g_}, 4, v{lane}", [f"v{lane}"], [f"v{g_}"])
    p.salu(f"s_and_b32 s{S_T0}, s2, 7", ["s2"], [f"s{S_T0}"])
    p.salu(f"s_lshl_b32 s{S_T0}, s{S_T0}, 3", [f"s{S_T0}"], [f"s{S_T0}"])
    p.salu(f"s_lshr_b32 s{S_T1}, s2, 5", ["s2"], [f"s{S_T1}"])
    p.salu(f"s_add_u32 s{S_T0}, s{S_T0}, s{S_T1}", [f"s{S_T0}", f"s{S_T1}"], [f"s{S_T0}"])
    p.salu(f"s_lshr_b32 s{S_T1}, s2, 3", ["s2"], [f"s{S_T1}"])
    p.salu(f"s_and_b32 s{S_T1}, s{S_T1}, 3", [f"s{S_T1}"], [f"s{S_T1}"])
    p.salu(f"s_lshl_b32 s{S_HEAD}, s{S_T0}, 2", [f"s{S_T0}"], [f"s{S_HEAD}"])
    p.salu(f"s_add_u32 s{S_HEAD}, s{S_HEAD}, s{S_T1}", [f"s{S_HEAD}", f"s{S_T1}"], [f"s{S_HEAD}"])
    p.salu(f"s_lshl_b32 s{S_LDSB}, s{S_WAVE}, 15", [f"s{S_WAVE}"], [f"s{S_LDSB}"])
    p.salu(f"s_lshl_b32 s{S_T2}, s{S_T0}, 18", [f"s{S_T0}"], [f"s{S_T2}"])
    p.salu(f"s_lshl_b32 s{S_T3}, s{S_WAVE}, 16", [f"s{S_WAVE}"], [f"s{S_T3}"])
    p.salu(f"s_add_u32 s{S_T2}, s{S_T2}, s{S_T3}", [f"s{S_T2}", f"s{S_T3}"], [f"s{S_T2}"])
    p.salu(f"s_mul_i32 s{S_T3}, s{S_HEAD}, 20480", [f"s{S_HEAD}"], [f"s{S_T3}"])
    p.wait("s_waitcnt lgkmcnt(0)")
    for (srd, ptr, off, size) in ((SRD_Q, S_Q, S_T3, 20480), (SRD_K, S_K, S_T2, 65536), (SRD_V, S_V, S_T2, 65536),
                                  (SRD_O, S_OUTP, S_T3, 20480)):
        p.salu(f"s_add_u32 s{srd}, s{ptr}, s{off}", [f"s{ptr}", f"s{off}"], [f"s{srd}", "scc"])
        p.salu(f"s_addc_u32 s{srd+1}, s{ptr+1}, 0", [f"s{ptr+1}", "scc"], [f"s{srd+1}"])
        p.salu(f"s_mov_b32 s{srd+2}, {size}", [], [f"s{srd+2}"])
        p.salu(f"s_mov_b32 s{srd+3}, 0x00020000", [], [f"s{srd+3}"])
    t0, t1, t2 = V_TMP[4], V_TMP[5], V_TMP[6]
    p.valu(f"v_lshlrev_b32 v{t0}, 8, v{n_}", [f"v{n_}"], [f"v{t0}"])
    p.valu(f"v_lshl_add_u32 v{V_QOFF}, v{g_}, 4, v{t0}", [f"v{g_}", f"v{t0}"], [f"v{V_QOFF}"])
    p.valu(f"v_xor_b32 v{t1}, v{n_}, v{g_}", [f"v{n_}", f"v{g_}"], [f"v{t1}"])
    p.valu(f"v_lshlrev_b32 v{t2}, 8, v{g_}", [f"v{g_}"], [f"v{t2}"])
    p.valu(f"v_lshl_add_u32 v{V_KD[0]}, v{t1}, 4, v{t2}", [f"v{t1}", f"v{t2}"], [f"v{V_KD[0]}"])
    for jj in range(1, 4):
        p.valu(f"v_xor_b32 v{V_KD[jj]}, {64*jj}, v{V_KD[0]}", [f"v{V_KD[0]}"], [f"v{V_KD[jj]}"])
    p.valu(f"v_lshl_add_u32 v{V_KR[0]}, v{t1}, 4, v{t0}", [f"v{t1}", f"v{t0}"], [f"v{V_KR[0]}"])
    p.valu(f"v_add_u32 v{V_KR[0]}, s{S_LDSB}, v{V_KR[0]}", [f"s{S_LDSB}", f"v{V_KR[0]}"], [f"v{V_KR[0]}"])
    for s in range(1, 4):
        p.valu(f"v_xor_b32 v{V_KR[s]}, {64*s}, v{V_KR[0]}", [f"v{V_KR[0]}"], [f"v{V_KR[s]}"])
    p.valu(f"v_bfe_u32 v{t0}, v{lane}, 1, 2", [f"v{lane}"], [f"v{t0}"])
    p.valu(f"v_lshlrev_b32 v{t0}, 8, v{t0}", [f"v{t0}"], [f"v{t0}"])
    p.valu(f"v_lshrrev_b32 v{t1}, 3, v{lane}", [f"v{lane}"], [f"v{t1}"])
    p.valu(f"v_lshl_add_u32 v{t0}, v{t1}, 5, v{t0}", [f"v{t1}", f"v{t0}"], [f"v{t0}"])
    p.valu(f"v_and_b32 v{t1}, 1, v{lane}", [f"v{lane}"], [f"v{t1}"])
    p.valu(f"v_lshl_add_u32 v{V_VD[0]}, v{t1}, 4, v{t0}", [f"v{t1}", f"v{t0}"], [f"v{V_VD[0]}"])
    p.valu(f"v_xor_b32 v{V_VD[1]}, 32, v{V_VD[0]}", [f"v{V_VD[0]}"], [f"v{V_VD[1]}"])
    p.valu(f"v_lshlrev_b32 v{t0}, 10, v{g_}", [f"v{g_}"], [f"v{t0}"])
    p.valu(f"v_and_b32 v{t1}, 1, v{g_}", [f"v{g_}"], [f"v{t1}"])
    p.valu(f"v_lshl_add_u32 v{t0}, v{t1}, 7, v{t0}", [f"v{t1}", f"v{t0}"], [f"v{t0}"])
    p.valu(f"v_bfe_u32 v{t1}, v{lane}, 2, 2", [f"v{lane}"], [f"v{t1}"])
    p.valu(f"v_lshl_add_u32 v{t0}, v{t1}, 5, v{t0}", [f"v{t1}", f"v{t0}"], [f"v{t0}"])
    p.valu(f"v_and_b32 v{t1}, 3, v{lane}", [f"v{lane}"], [f"v{t1}"])
    p.valu(f"v_lshl_add_u32 v{t0}, v{t1}, 3, v{t0}", [f"v{t1}", f"v{t0}"], [f"v{t0}"])
    p.valu(f"v_add_u32 v{V_VR[0]}, s{S_LDSB}, v{t0}", [f"s{S_LDSB}", f"v{t0}"], [f"v{V_VR[0]}"])
    p.valu(f"v_xor_b32 v{V_VR[1]}, 128, v{V_VR[0]}", [f"v{V_VR[0]}"], [f"v{V_VR[1]}"])
    p.valu(f"v_lshlrev_b32 v{V_LANE16}, 4, v{lane}", [f"v{lane}"], [f"v{V_LANE16}"])
    p.valu(f"v_lshlrev_b32 v{t0}, 8, v{n_}", [f"v{n_}"], [f"v{t0}"])
    p.valu(f"v_lshl_add_u32 v{V_OUT}, v{g_}, 3, v{t0}", [f"v{g_}", f"v{t0}"], [f"v{V_OUT}"])
    p.salu(f"s_lshr_b32 s{S_T1}, s{S_HEAD}, 2", [f"s{S_HEAD}"], [f"s{S_T1}"])
    p.salu(f"s_lshl_b32 s{S_T2}, s{S_WAVE}, 1", [f"s{S_WAVE}"], [f"s{S_T2}"])
    p.salu(f"s_add_u32 s{S_T1}, s{S_T1}, s{S_T2}", [f"s{S_T1}", f"s{S_T2}"], [f"s{S_T1}"])
    if DELTA:
        p.salu(f"s_and_b32 s{S_T2}, s{S_HEAD}, 3", [f"s{S_HEAD}"], [f"s{S_T2}"])
        p.salu(f"s_mul_i32 s{S_T2}, s{S_T2}, {DELTA}", [f"s{S_T2}"], [f"s{S_T2}"])
        p.salu(f"s_add_u32 s{S_T1}, s{S_T1}, s{S_T2}", [f"s{S_T1}", f"s{S_T2}"], [f"s{S_T1}"])
    p.salu(f"s_and_b32 s{S_T1}, s{S_T1}, {ROTMASK}", [f"s{S_T1}"], [f"s{S_T1}"])
    p.salu(f"s_lshl_b32 s{S_KOFFA}, s{S_T1}, 13", [f"s{S_T1}"], [f"s{S_KOFFA}"])
    p.salu(f"s_add_u32 s{S_KOFFB}, s{S_KOFFA}, 4096", [f"s{S_KOFFA}"], [f"s{S_KOFFB}"])
    p.salu(f"s_mov_b32 s{S_VOFFA}, s{S_KOFFA}", [f"s{S_KOFFA}"], [f"s{S_VOFFA}"])
    p.salu(f"s_mov_b32 s{S_VOFFB}, s{S_KOFFB}", [f"s{S_KOFFB}"], [f"s{S_VOFFB}"])
    p.salu(f"s_mov_b32 s{S_C}, {f32hex(C_SCALE)}", [], [f"s{S_C}"])
    p.salu(f"s_mov_b32 s{S_FIRST}, 1", [], [f"s{S_FIRST}"])
    p.salu(f"s_mov_b32 s{S_CNT}, 0", [], [f"s{S_CNT}"])
    straight(p, k_dma(0))
    tq = V_TMP[7]
    for i in range(5):
        p.salu(f"s_add_u32 s{S_T0}, s{S_WAVE}, {i}", [f"s{S_WAVE}"], [f"s{S_T0}"])
        p.salu(f"s_and_b32 s{S_T0}, s{S_T0}, 3", [f"s{S_T0}"], [f"s{S_T0}"])
        p.salu(f"s_lshl_b32 s{S_T0}, s{S_T0}, 6", [f"s{S_T0}"], [f"s{S_T0}"])
        p.valu(f"v_xor_b32 v{tq}, s{S_T0}, v{V_KD[0]}", [f"s{S_T0}", f"v{V_KD[0]}"], [f"v{tq}"])
        p.salu(f"s_mul_i32 s{S_T1}, s{S_WAVE}, 5120", [f"s{S_WAVE}"], [f"s{S_T1}"])
        p.salu(f"s_add_u32 s{S_T1}, s{S_T1}, {1024*i}", [f"s{S_T1}"], [f"s{S_T1}"])
        p.salu(f"s_add_u32 m0, s{S_T1}, {LDS_Q}", [f"s{S_T1}"], ["m0"])
        p.nop(0)
        p.vmem(f"buffer_load_dwordx4 v{tq}, s[{SRD_Q}:{SRD_Q+3}], s{S_T1} offen {NT} lds",
               [f"v{tq}", f"s{S_T1}", "m0"], [])
        p.nop(1)
    if PROF:
        stamp(p, 1)
        p.wait("s_waitcnt vmcnt(51)")
        stamp(p, 2)
        p.wait("s_waitcnt vmcnt(32)")
        stamp(p, 3)
    for a in range(160):
        p.valu(f"v_accvgpr_write_b32 a{a}, 0", [], [f"a{a}"])
    for v in range(V_L, V_L + 20):
        p.valu(f"v_mov_b32 v{v}, 0", [], [f"v{v}"])
    for v in range(V_VF, V_VF + 32):
        p.valu(f"v_mov_b32 v{v}, 0", [], [f"v{v}"])
    for v in range(V_P[0], V_P[0] + 8):
        p.valu(f"v_mov_b32 v{v}, 0", [], [f"v{v}"])
    for q in range(4):
        p.valu(f"v_mov_b32 v{V_ONES+q}, 0x3f803f80", [], [f"v{V_ONES+q}"])
    for r in range(5):
        p.valu(f"v_mov_b32 v{V_MREF[r]}, 0xff800000", [], [f"v{V_MREF[r]}"])
        p.valu(f"v_mov_b32 v{V_THR[r]}, 0xff800000", [], [f"v{V_THR[r]}"])
        p.valu(f"v_mov_b32 v{V_NEGM[r]}, 0", [], [f"v{V_NEGM[r]}"])
    straight(p, v_dma(0))
    straight(p, k_dma(1))
    straight(p, v_dma(1))
    qa = [V_TMP[5], V_TMP[6], V_TMP[7], V_TMP[8]]
    p.valu(f"v_subrev_u32 v{qa[0]}, s{S_LDSB}, v{V_KR[0]}", [f"s{S_LDSB}", f"v{V_KR[0]}"], [f"v{qa[0]}"])
    p.valu(f"v_add_u32 v{qa[0]}, {LDS_Q}, v{qa[0]}", [f"v{qa[0]}"], [f"v{qa[0]}"])
    for s_ in range(1, 4):
        p.valu(f"v_xor_b32 v{qa[s_]}, {64*s_}, v{qa[0]}", [f"v{qa[0]}"], [f"v{qa[s_]}"])
    p.wait("s_waitcnt vmcnt(24)")
    p.add(Ins("s_barrier", "salu"))
    for r in range(5):
        for s_ in range(4):
            p.ds(f"ds_read_b128 {ar(AQ(r, s_), 4)}, v{qa[s_]} offset:{4096*r}", [f"v{qa[s_]}"], regs("a", AQ(r, s_), 4))
    stamp(p, 4)
    for t in range(2):
        for s in range(4):
            p.add(k_frag_read(t, s, 0))
    p.wait("s_waitcnt lgkmcnt(0)")
    straight(p, k_dma(0))
    for m in qk_mfmas(0, 0):
        p.add(m)
    p.nop(7)

    def emit_block(pb, kdma, vdma, wait_v, wait_k, kread, last, tagp):
        for r in range(5):
            upar = (pb + r) & 1
            rn = (r + 1) % 5
            rp = (r - 1) % 5
            if last and r == 4:
                mf = pv_mfmas(upar ^ 1, rp)
                off = 0
            else:
                mf = qk_mfmas(upar ^ 1, rn) + pv_mfmas(upar ^ 1, rp)
                off = 8
            tag = f"{tagp}_{r}"
            slow_list.append((r, tag))
            va = sm_valu(upar, upar, r, tag)
            pre = []
            attach = {}
            if last and r == 4:
                pre.append(Ins("s_nop 1", "nop", slots=2))
            if r == 3 and kread:
                pre.append(Ins(f"s_waitcnt vmcnt({wait_k})", "wait"))
                k = 0
                for t in range(2):
                    for s_ in range(4):
                        attach[k] = [k_frag_read(t, s_, pb ^ 1)]
                        k += 1
            elif r == 4 and kread:
                pre.append(Ins("s_waitcnt lgkmcnt(0)", "wait"))
                if kdma:
                    d = k_dma(pb ^ 1)
                    attach[0] = [d[0]]
                    for q in range(4):
                        attach[1 + q] = [d[1 + q]]
                    attach[5] = [d[5]]
                    for q in range(4):
                        attach[6 + q] = [d[6 + q]]
                    attach[10] = [d[10], d[11], d[12]]
            elif r == 0:
                pre.append(Ins(f"s_waitcnt vmcnt({wait_v})", "wait"))
                for i in range(8):
                    attach[8 + i] = [v_frag_read(i, 0, pb), v_frag_read(i, 1, pb)]
            elif r == 1:
                pre.append(Ins("s_waitcnt lgkmcnt(0)", "wait"))
                if vdma:
                    d = v_dma(pb)
                    attach[0] = [d[0]]
                    for q in range(4):
                        attach[1 + q] = [d[1 + q]]
                    attach[5] = [d[5]]
                    for q in range(4):
                        attach[6 + q] = [d[6 + q]]
                    attach[10] = [d[10], d[11], d[12]]
            merge_step(p, mf, va, pre=pre, attach=attach)

    p.label("L_LOOP")
    for pb in range(2):
        emit_block(pb, True, True, 24, 24, True, False, f"{pb}")
        if pb == 0:
            p.salu(f"s_mov_b32 s{S_FIRST}, 0", [], [f"s{S_FIRST}"])
    p.salu(f"s_add_u32 s{S_CNT}, s{S_CNT}, 1", [f"s{S_CNT}"], [f"s{S_CNT}", "scc"])
    p.salu(f"s_cmp_lt_u32 s{S_CNT}, {(NBLK-2)//2}", [f"s{S_CNT}"], ["scc"])
    p.branch("s_cbranch_scc1 L_LOOP")
    stamp(p, 5)
    emit_block(0, False, False, 16, 8, True, False, "6")
    emit_block(1, False, False, 0, 0, False, True, "7")

    p.nop(1)
    for m in pv_mfmas(1, 4):
        p.add(m)

    epilogue(p)
    p.label("L_END")
    p.add(Ins("s_endpgm", "branch"))
    for (r, tag) in slow_list:
        slow_path(p, r, tag)
    return p


def epilogue(p):
    E = V_E
    p.wait("s_waitcnt vmcnt(0)")
    p.nop(7)
    p.nop(7)
    t0, t1 = V_TMP[0], V_TMP[1]
    p.valu(f"v_and_b32 v{t0}, 15, v0", ["v0"], [f"v{t0}"])
    p.salu(f"s_mul_i32 s{S_T0}, s{S_WAVE}, 640", [f"s{S_WAVE}"], [f"s{S_T0}"])
    p.salu(f"s_add_u32 s{S_T0}, s{S_T0}, {LDS_ML}", [f"s{S_T0}"], [f"s{S_T0}"])
    p.valu(f"v_lshl_add_u32 v{t1}, v{t0}, 3, s{S_T0}", [f"v{t0}", f"s{S_T0}"], [f"v{t1}"])
    p.valu(f"v_lshlrev_b32 v{t0}, 3, v{t0}", [f"v{t0}"], [f"v{t0}"])
    p.valu(f"v_add_u32 v{t0}, {LDS_ML}, v{t0}", [f"v{t0}"], [f"v{t0}"])
    for r in range(5):
        p.ds(f"ds_write2_b32 v{t1}, v{V_MREF[r]}, v{VL(r)} offset0:{32*r} offset1:{32*r+1}",
             [f"v{t1}", f"v{V_MREF[r]}", f"v{VL(r)}"], [])
    p.salu(f"s_cmp_eq_u32 s{S_WAVE}, 1", [f"s{S_WAVE}"], ["scc"])
    p.branch("s_cbranch_scc1 L_EPI1")
    p.salu(f"s_cmp_eq_u32 s{S_WAVE}, 2", [f"s{S_WAVE}"], ["scc"])
    p.branch("s_cbranch_scc1 L_EPI2")
    p.salu(f"s_cmp_eq_u32 s{S_WAVE}, 3", [f"s{S_WAVE}"], ["scc"])
    p.branch("s_cbranch_scc1 L_EPI3")
    for w in range(4):
        p.label(f"L_EPI{w}")
        epilogue_wave(p, w)
        if w < 3:
            p.branch("s_branch L_END")


def epilogue_wave(p, w):
    E = V_E
    vw = E
    p.valu(f"v_add_u32 v{vw}, {w*LDS_WAVE}, v{V_LANE16}", [f"v{V_LANE16}"], [f"v{vw}"])
    for k in range(3):
        wd = (w + 1 + k) & 3
        for ti in range(10):
            i = 2 * wd + (ti // 5)
            r = ti % 5
            off = k * 10240 + ti * 1024
            a = AO(i, r)
            p.ds(f"ds_write_b128 v{vw}, {ar(a, 4)} offset:{off}", [f"v{vw}"] + regs("a", a, 4), [])
    p.wait("s_waitcnt lgkmcnt(0)")
    p.add(Ins("s_barrier", "salu"))
    stamp(p, 6)
    n8 = V_TMP[0]
    MLB = E + 2
    for ws in range(4):
        for r in range(5):
            d = MLB + 2 * (ws * 5 + r)
            p.ds(f"ds_read_b64 {vr(d, 2)}, v{n8} offset:{ws*640 + r*128}", [f"v{n8}"], regs("v", d, 2))
    p.wait("s_waitcnt lgkmcnt(0)")
    FB = MLB + 40
    ta, tb = V_TMP[2], V_TMP[3]
    for r in range(5):
        m = [MLB + 2 * (ws * 5 + r) for ws in range(4)]
        l = [x + 1 for x in m]
        f = [FB + ws * 5 + r for ws in range(4)]
        p.valu(f"v_max3_f32 v{ta}, v{m[0]}, v{m[1]}, v{m[2]}", [f"v{m[0]}", f"v{m[1]}", f"v{m[2]}"], [f"v{ta}"])
        p.valu(f"v_max_f32 v{ta}, v{ta}, v{m[3]}", [f"v{ta}", f"v{m[3]}"], [f"v{ta}"])
        for ws in range(4):
            p.valu(f"v_sub_f32 v{f[ws]}, v{m[ws]}, v{ta}", [f"v{m[ws]}", f"v{ta}"], [f"v{f[ws]}"])
        for ws in range(4):
            p.valu(f"v_mul_f32 v{f[ws]}, s{S_C}, v{f[ws]}", [f"s{S_C}", f"v{f[ws]}"], [f"v{f[ws]}"])
        for ws in range(4):
            p.trans(f"v_exp_f32 v{f[ws]}, v{f[ws]}", [f"v{f[ws]}"], [f"v{f[ws]}"])
        p.nop(0)
        p.valu(f"v_mul_f32 v{tb}, v{f[0]}, v{l[0]}", [f"v{f[0]}", f"v{l[0]}"], [f"v{tb}"])
        for ws in range(1, 4):
            p.valu(f"v_fmac_f32 v{tb}, v{f[ws]}, v{l[ws]}", [f"v{tb}", f"v{f[ws]}", f"v{l[ws]}"], [f"v{tb}"])
        p.trans(f"v_rcp_f32 v{tb}, v{tb}", [f"v{tb}"], [f"v{tb}"])
        p.nop(0)
        for ws in range(4):
            p.valu(f"v_mul_f32 v{f[ws]}, v{f[ws]}, v{tb}", [f"v{f[ws]}", f"v{tb}"], [f"v{f[ws]}"])
    RB = FB + 20
    ACC = RB + 12
    PK = ACC + 4
    if PK % 2:
        PK += 1
    srcs = [ws for ws in range(4) if ws != w]
    RA = PK + 2
    for q, ws in enumerate(srcs):
        k = (w - ws - 1) & 3
        p.valu(f"v_add_u32 v{RA+q}, {ws*LDS_WAVE + k*10240}, v{V_LANE16}", [f"v{V_LANE16}"], [f"v{RA+q}"])
    for ti in range(10):
        i = 2 * w + (ti // 5)
        r = ti % 5
        for q, ws in enumerate(srcs):
            d = RB + 4 * q
            p.ds(f"ds_read_b128 {vr(d, 4)}, v{RA+q} offset:{ti*1024}", [f"v{RA+q}"], regs("v", d, 4))
        a = AO(i, r)
        for e in range(4):
            p.valu(f"v_accvgpr_read_b32 v{ACC+e}, a{a+e}", [f"a{a+e}"], [f"v{ACC+e}"])
        p.nop(0)
        fw = FB + w * 5 + r
        for e in range(4):
            p.valu(f"v_mul_f32 v{ACC+e}, v{ACC+e}, v{fw}", [f"v{ACC+e}", f"v{fw}"], [f"v{ACC+e}"])
        p.wait("s_waitcnt lgkmcnt(0)")
        for q, ws in enumerate(srcs):
            f = FB + ws * 5 + r
            for e in range(4):
                s_ = RB + 4 * q + e
                p.valu(f"v_fmac_f32 v{ACC+e}, v{s_}, v{f}", [f"v{ACC+e}", f"v{s_}", f"v{f}"], [f"v{ACC+e}"])
        p.valu(f"v_cvt_pk_bf16_f32 v{PK}, v{ACC}, v{ACC+1}", [f"v{ACC}", f"v{ACC+1}"], [f"v{PK}"])
        p.valu(f"v_cvt_pk_bf16_f32 v{PK+1}, v{ACC+2}, v{ACC+3}", [f"v{ACC+2}", f"v{ACC+3}"], [f"v{PK+1}"])
        if r == 0:
            so = "0"
        else:
            p.salu(f"s_mov_b32 s{S_T0}, {4096*r}", [], [f"s{S_T0}"])
            so = f"s{S_T0}"
        p.vmem(f"buffer_store_dwordx2 {vr(PK, 2)}, v{V_OUT}, s[{SRD_O}:{SRD_O+3}], {so} offen offset:{32*i}",
               regs("v", PK, 2) + [f"v{V_OUT}"], [])
        p.nop(1)
    p.wait("s_waitcnt vmcnt(0)")
    dump_stamps(p)


def check_hazards(ins):
    errs = []
    seq = [x for x in ins if x.kind not in ("label",)]
    n = len(seq)

    def dist_states(i, j):
        d = 0
        for k in range(i + 1, j):
            x = seq[k]
            d += x.slots if x.kind == "nop" else 1
        return d

    for j, y in enumerate(seq):
        for i in range(max(0, j - 24), j):
            x = seq[i]
            d = None
            if x.kind == "mfma":
                D = set(x.wr)
                if y.kind in ("valu", "trans", "ds", "vmem"):
                    if D & (set(y.rd) | set(y.wr)):
                        d = dist_states(i, j)
                        if d < 8:
                            errs.append(f"MFMA D->{y.kind} dist {d}: {x.text} | {y.text}")
                if y.kind == "mfma":
                    ab = set(y.rd) - set(y.srcc)
                    if D & ab:
                        d = dist_states(i, j)
                        if d < 8:
                            errs.append(f"MFMA D->MFMA AB dist {d}: {x.text} | {y.text}")
                    if (D & set(y.srcc)) and set(y.srcc) != D:
                        errs.append(f"MFMA D->partial SrcC: {x.text} | {y.text}")
                if y.kind in ("valu", "trans") and (set(x.srcc) & set(y.wr)):
                    d = dist_states(i, j)
                    if d < 3:
                        errs.append(f"MFMA SrcC WAR dist {d}: {x.text} | {y.text}")
            if x.kind in ("valu", "trans"):
                W = set(x.wr)
                if y.kind == "mfma" and (W & set(y.rd)):
                    d = dist_states(i, j)
                    if d < 2:
                        errs.append(f"VALU->MFMA dist {d}: {x.text} | {y.text}")
                if "permlane" in y.text and (W & set(y.rd)):
                    d = dist_states(i, j)
                    if d < 2:
                        errs.append(f"VALU->permlane dist {d}: {x.text} | {y.text}")
                if "readfirstlane" in y.text and (W & set(y.rd)):
                    d = dist_states(i, j)
                    if d < 1:
                        errs.append(f"VALU->readfirstlane dist {d}: {x.text} | {y.text}")
                sg = {r_ for r_ in W if r_.startswith("s") or r_ == "vcc"}
                if sg and y.kind in ("valu", "trans") and (sg & set(y.rd)):
                    d = dist_states(i, j)
                    if d < 2:
                        errs.append(f"VALU sgpr->VALU dist {d}: {x.text} | {y.text}")
                if sg and y.kind == "vmem" and (sg & set(y.rd)):
                    d = dist_states(i, j)
                    if d < 5:
                        errs.append(f"VALU sgpr->VMEM dist {d}: {x.text} | {y.text}")
            if x.kind == "trans" and y.kind == "valu" and (set(x.wr) & set(y.rd)):
                d = dist_states(i, j)
                if d < 1:
                    errs.append(f"trans->VALU dist {d}: {x.text} | {y.text}")
            if x.kind == "salu" and "m0" in x.wr and y.kind == "vmem" and "m0" in y.rd:
                d = dist_states(i, j)
                if d < 1:
                    errs.append(f"m0->DMA dist {d}: {x.text} | {y.text}")
            if x.kind == "vmem" and "store" in x.text and y.kind in ("valu", "trans"):
                data = {r_ for r_ in x.rd if r_.startswith("v")}
                if data & set(y.wr):
                    d = dist_states(i, j)
                    if d < 2:
                        errs.append(f"store data WAR dist {d}: {x.text} | {y.text}")
    return errs


def main(out_path):
    p = build()
    ins = p.ins
    li = next(k for k, x in enumerate(ins) if x.text == "L_LOOP:")
    le = next(k for k, x in enumerate(ins) if x.text == "s_cbranch_scc1 L_LOOP")
    endk = next(k for k, x in enumerate(ins) if x.text == "L_END:")
    body = ins[li:le + 1]
    lin = ins[:le + 1] + body + ins[le + 1:endk]
    errs = check_hazards(lin)
    errs += check_hazards(ins[endk:])
    if errs:
        print("HAZARDS:\n" + "\n".join(errs[:50]), file=sys.stderr)
        sys.exit(1)
    L = []
    L.append(f"; @launch grid=(256,1,1) block=(256,1,1) lds={LDS_TOTAL}")
    L.append('.amdgcn_target "amdgcn-amd-amdhsa--gfx950"')
    L.append(".text")
    L.append(".globl standalone__gqa_softmax__near_ridge_kernel")
    L.append(".p2align 8")
    L.append(".type standalone__gqa_softmax__near_ridge_kernel,@function")
    L.append("standalone__gqa_softmax__near_ridge_kernel:")
    for x in ins:
        if x.kind == "label":
            L.append(x.text)
        else:
            L.append("    " + x.text)
    L.append('.section .rodata,"a"')
    L.append(".p2align 6")
    L.append(".amdhsa_kernel standalone__gqa_softmax__near_ridge_kernel")
    L.append("  .amdhsa_next_free_vgpr 496")
    L.append(f"  .amdhsa_next_free_sgpr {NUM_SGPR}")
    L.append("  .amdhsa_accum_offset 256")
    L.append("  .amdhsa_group_segment_fixed_size 0")
    L.append("  .amdhsa_kernarg_size 48")
    L.append("  .amdhsa_user_sgpr_count 2")
    L.append("  .amdhsa_user_sgpr_kernarg_segment_ptr 1")
    L.append("  .amdhsa_system_sgpr_workgroup_id_x 1")
    L.append(".end_amdhsa_kernel")
    open(out_path, "w").write("\n".join(L) + "\n")
    nm = sum(1 for x in ins if x.kind == "mfma")
    print(f"wrote {out_path}: {len(ins)} instrs, {nm} mfma")


if __name__ == "__main__":
    if len(sys.argv) > 2 and sys.argv[2] == "prof":
        PROF = True
    if len(sys.argv) > 3:
        DELTA = int(sys.argv[3])
    main(sys.argv[1] if len(sys.argv) > 1 else "standalone__gqa_softmax__near_ridge.s")
```

```python
import sys
import numpy as np

C_SCALE = np.float32(1.4426950408889634 / np.sqrt(128.0))
T_LOG2 = 8.0
THR_RAW = np.float32(T_LOG2 / float(C_SCALE))


def f32hex(x):
    return "0x%08x" % int(np.float32(x).view(np.uint32))


V_TID = 0
V_TMP = [1, 2, 3, 4, 5, 6, 7, 8, 9]
V_KD = [10, 11, 12, 13]
V_VD = [14, 15]
V_KR = [16, 17, 18, 19]
V_VR = [20, 21]
V_QOFF = 22
V_LANE16 = 23
V_OUT = 24
V_MREF = [25, 26, 27, 28, 29]
V_THR = [30, 31, 32, 33, 34]
V_NEGM = [35, 36, 37, 38, 39]
V_ONES = 40
V_S = [44, 52]
V_P = [60, 64]
V_L = 68
V_KF = 88
V_VF = 120
V_E = 152

A_O = 0
A_Q = 160

S_Q, S_K, S_V, S_OUTP = 4, 6, 8, 10
SRD_Q, SRD_K, SRD_V, SRD_O = 12, 16, 20, 24
S_WAVE = 28
S_T0 = 29
S_LDSB = 30
S_KOFFA, S_KOFFB = 31, 32
S_VOFFA, S_VOFFB = 33, 34
S_CNT = 35
S_C = 36
S_FIRST = 37
S_T1 = 38
S_T2 = 39
S_T3 = 40
S_HEAD = 41
NUM_SGPR = 80

LDS_WAVE = 32768
LDS_ML = 4 * LDS_WAVE
LDS_Q = LDS_ML + 4 * 5 * 16 * 8
LDS_TOTAL = LDS_Q + 20480

NBLK = 8
DELTA = 0
NT = 'nt'
ROTMASK = 7
PROF = False
S_TS = 42
S_WSP = 44
SRD_WS = 48


def vr(b, n=1):
    return f"v{b}" if n == 1 else f"v[{b}:{b+n-1}]"


def ar(b, n=1):
    return f"a{b}" if n == 1 else f"a[{b}:{b+n-1}]"


def regs(prefix, b, n):
    return [f"{prefix}{b+i}" for i in range(n)]


class Ins:
    __slots__ = ("text", "kind", "rd", "wr", "srcc", "slots")

    def __init__(self, text, kind, rd=(), wr=(), srcc=(), slots=1):
        self.text = text
        self.kind = kind
        self.rd = list(rd)
        self.wr = list(wr)
        self.srcc = list(srcc)
        self.slots = slots


class Prog:
    def __init__(self):
        self.ins = []

    def add(self, i):
        self.ins.append(i)
        return i

    def salu(self, text, rd=(), wr=()):
        return self.add(Ins(text, "salu", rd, wr))

    def valu(self, text, rd=(), wr=()):
        return self.add(Ins(text, "valu", rd, wr))

    def trans(self, text, rd=(), wr=()):
        return self.add(Ins(text, "trans", rd, wr, slots=2))

    def wait(self, text):
        return self.add(Ins(text, "wait"))

    def nop(self, n):
        return self.add(Ins(f"s_nop {n}", "nop", slots=n + 1))

    def label(self, name):
        return self.add(Ins(f"{name}:", "label"))

    def branch(self, text):
        return self.add(Ins(text, "branch"))

    def ds(self, text, rd=(), wr=()):
        return self.add(Ins(text, "ds", rd, wr))

    def vmem(self, text, rd=(), wr=()):
        return self.add(Ins(text, "vmem", rd, wr))


def mfma(dst_pref, dst, a_pref, a, b_pref, b, c_zero=False):
    d = f"{dst_pref}[{dst}:{dst+3}]"
    aa = f"{a_pref}[{a}:{a+3}]"
    bb = f"{b_pref}[{b}:{b+3}]"
    cc = "0" if c_zero else d
    rd = regs(a_pref, a, 4) + regs(b_pref, b, 4)
    srcc = [] if c_zero else regs(dst_pref, dst, 4)
    return Ins(f"v_mfma_f32_16x16x32_bf16 {d}, {aa}, {bb}, {cc}", "mfma", rd + srcc, regs(dst_pref, dst, 4),
               srcc=srcc, slots=2)


def KF(t, s):
    return V_KF + 4 * (4 * t + s)


def VF(i):
    return V_VF + 4 * i


def AO(i, r):
    return A_O + 4 * (8 * r + i)


def AQ(r, s):
    return A_Q + 4 * (4 * r + s)


def VL(r):
    return V_L + 4 * r


def dma_group(p, srd, vdma_regs, soff_sgpr, m0_imm, jlist):
    out = []
    out.append(Ins(f"s_add_u32 m0, s{S_LDSB}, {m0_imm}", "salu", [f"s{S_LDSB}"], ["m0"]))
    for q, j in enumerate(jlist):
        vo = vdma_regs[j % len(vdma_regs)]
        out.append(Ins(f"buffer_load_dwordx4 v{vo}, s[{srd}:{srd+3}], s{soff_sgpr} offen offset:{q*1024} {NT} lds",
                       "vmem", [f"v{vo}", f"s{soff_sgpr}", "m0"], []))
    return out


def k_dma(slab):
    base = slab * 8192
    g0 = dma_group(None, SRD_K, V_KD, S_KOFFA, base, [0, 1, 2, 3])
    g1 = dma_group(None, SRD_K, V_KD, S_KOFFB, base + 4096, [4, 5, 6, 7])
    upd = [Ins(f"s_add_u32 s{S_KOFFB}, s{S_KOFFA}, 8192", "salu", [f"s{S_KOFFA}"], [f"s{S_KOFFB}"]),
           Ins(f"s_and_b32 s{S_KOFFA}, s{S_KOFFB}, 0xffff", "salu", [f"s{S_KOFFB}"], [f"s{S_KOFFA}"]),
           Ins(f"s_add_u32 s{S_KOFFB}, s{S_KOFFA}, 4096", "salu", [f"s{S_KOFFA}"], [f"s{S_KOFFB}"])]
    return g0 + g1 + upd


def v_dma(slab):
    base = 16384 + slab * 8192
    g0 = dma_group(None, SRD_V, V_VD, S_VOFFA, base, [0, 1, 2, 3])
    g1 = dma_group(None, SRD_V, V_VD, S_VOFFB, base + 4096, [4, 5, 6, 7])
    upd = [Ins(f"s_add_u32 s{S_VOFFB}, s{S_VOFFA}, 8192", "salu", [f"s{S_VOFFA}"], [f"s{S_VOFFB}"]),
           Ins(f"s_and_b32 s{S_VOFFA}, s{S_VOFFB}, 0xffff", "salu", [f"s{S_VOFFB}"], [f"s{S_VOFFA}"]),
           Ins(f"s_add_u32 s{S_VOFFB}, s{S_VOFFA}, 4096", "salu", [f"s{S_VOFFA}"], [f"s{S_VOFFB}"])]
    return g0 + g1 + upd


def straight(p, lst):
    for x in lst:
        p.add(x)
        if "m0" in x.wr:
            p.nop(0)


def k_frag_read(t, s, slab):
    off = slab * 8192 + t * 4096
    return Ins(f"ds_read_b128 {vr(KF(t, s), 4)}, v{V_KR[s]} offset:{off}", "ds", [f"v{V_KR[s]}"],
               regs("v", KF(t, s), 4))


def v_frag_read(i, h, slab):
    off = 16384 + slab * 8192 + h * 4096 + (i >> 1) * 256
    d = VF(i) + 2 * h
    return Ins(f"ds_read_b64_tr_b16 {vr(d, 2)}, v{V_VR[i & 1]} offset:{off}", "ds", [f"v{V_VR[i & 1]}"],
               regs("v", d, 2))


def qk_mfmas(sbuf, rnext):
    out = []
    for t in range(2):
        for s in range(4):
            out.append(mfma("v", V_S[sbuf] + 4 * t, "v", KF(t, s), "a", AQ(rnext, s), c_zero=(s == 0)))
    return out


def pv_mfmas(pbuf, rprev):
    out = []
    for i in range(8):
        out.append(mfma("a", AO(i, rprev), "v", VF(i), "v", V_P[pbuf]))
    out.append(mfma("v", VL(rprev), "v", V_ONES, "v", V_P[pbuf]))
    return out


def sm_valu(sbuf, pbuf, r, tag):
    S = [V_S[sbuf] + k for k in range(8)]
    mx0, mx1 = V_TMP[0], V_TMP[1]
    out = []
    out.append(Ins(f"v_max3_f32 v{mx0}, v{S[0]}, v{S[1]}, v{S[2]}", "valu", [f"v{S[0]}", f"v{S[1]}", f"v{S[2]}"],
                   [f"v{mx0}"]))
    out.append(Ins(f"v_max3_f32 v{mx1}, v{S[3]}, v{S[4]}, v{S[5]}", "valu", [f"v{S[3]}", f"v{S[4]}", f"v{S[5]}"],
                   [f"v{mx1}"]))
    out.append(Ins(f"v_max3_f32 v{mx0}, v{S[6]}, v{S[7]}, v{mx0}", "valu", [f"v{S[6]}", f"v{S[7]}", f"v{mx0}"],
                   [f"v{mx0}"]))
    out.append(Ins(f"v_max_f32 v{mx0}, v{mx0}, v{mx1}", "valu", [f"v{mx0}", f"v{mx1}"], [f"v{mx0}"]))
    out.append(Ins(f"v_cmp_gt_f32 vcc, v{mx0}, v{V_THR[r]}", "valu", [f"v{mx0}", f"v{V_THR[r]}"], ["vcc"]))
    out.append(Ins(f"s_cbranch_vccnz SLOW_{tag}", "branch", ["vcc"], []))
    out.append(Ins(f"RET_{tag}:", "label"))
    for k in range(8):
        out.append(Ins(f"v_fma_f32 v{S[k]}, v{S[k]}, s{S_C}, v{V_NEGM[r]}", "valu",
                       [f"v{S[k]}", f"s{S_C}", f"v{V_NEGM[r]}"], [f"v{S[k]}"]))
    for k in range(8):
        out.append(Ins(f"v_exp_f32 v{S[k]}, v{S[k]}", "trans", [f"v{S[k]}"], [f"v{S[k]}"], slots=2))
    for q in range(4):
        d = V_P[pbuf] + q
        out.append(Ins(f"v_cvt_pk_bf16_f32 v{d}, v{S[2*q]}, v{S[2*q+1]}", "valu",
                       [f"v{S[2*q]}", f"v{S[2*q+1]}"], [f"v{d}"]))
    return out


def merge_step(p, mf, valu, pre=(), attach=None, budget=2):
    attach = attach or {}
    for x in pre:
        p.add(x)
    vi = 0
    for k, m in enumerate(mf):
        p.add(m)
        for x in attach.get(k, []):
            p.add(x)
        used = 0
        while vi < len(valu):
            nxt = valu[vi]
            if nxt.kind == "label":
                p.add(nxt)
                vi += 1
                continue
            if used + nxt.slots > budget and used > 0:
                break
            p.add(nxt)
            used += nxt.slots
            vi += 1
    while vi < len(valu):
        p.add(valu[vi])
        vi += 1


def slow_path(p, r, tag):
    mx, tA, tB, tC = V_TMP[0], V_TMP[2], V_TMP[3], V_TMP[4]
    p.label(f"SLOW_{tag}")
    p.valu(f"v_mov_b32 v{tA}, v{mx}", [f"v{mx}"], [f"v{tA}"])
    p.nop(1)
    p.valu(f"v_permlane16_swap_b32 v{mx}, v{tA}", [f"v{mx}", f"v{tA}"], [f"v{mx}", f"v{tA}"])
    p.nop(0)
    p.valu(f"v_max_f32 v{mx}, v{mx}, v{tA}", [f"v{mx}", f"v{tA}"], [f"v{mx}"])
    p.valu(f"v_mov_b32 v{tA}, v{mx}", [f"v{mx}"], [f"v{tA}"])
    p.nop(1)
    p.valu(f"v_permlane32_swap_b32 v{mx}, v{tA}", [f"v{mx}", f"v{tA}"], [f"v{mx}", f"v{tA}"])
    p.nop(0)
    p.valu(f"v_max_f32 v{mx}, v{mx}, v{tA}", [f"v{mx}", f"v{tA}"], [f"v{mx}"])
    p.valu(f"v_max_f32 v{tB}, v{V_MREF[r]}, v{mx}", [f"v{V_MREF[r]}", f"v{mx}"], [f"v{tB}"])
    p.valu(f"v_sub_f32 v{tC}, v{V_MREF[r]}, v{tB}", [f"v{V_MREF[r]}", f"v{tB}"], [f"v{tC}"])
    p.valu(f"v_mul_f32 v{tC}, s{S_C}, v{tC}", [f"s{S_C}", f"v{tC}"], [f"v{tC}"])
    p.trans(f"v_exp_f32 v{tC}, v{tC}", [f"v{tC}"], [f"v{tC}"])
    p.valu(f"v_mov_b32 v{V_MREF[r]}, v{tB}", [f"v{tB}"], [f"v{V_MREF[r]}"])
    p.valu(f"v_add_f32 v{V_THR[r]}, {f32hex(THR_RAW)}, v{tB}", [f"v{tB}"], [f"v{V_THR[r]}"])
    p.valu(f"v_mul_f32 v{V_NEGM[r]}, {f32hex(-C_SCALE)}, v{tB}", [f"v{tB}"], [f"v{V_NEGM[r]}"])
    p.salu(f"s_cmp_lg_u32 s{S_FIRST}, 0", [f"s{S_FIRST}"], ["scc"])
    p.branch(f"s_cbranch_scc1 RET_{tag}")
    p.nop(7)
    tmps = [V_TMP[5], V_TMP[6], V_TMP[7], V_TMP[8]]
    for i in range(8):
        for q in range(4):
            a = AO(i, r) + q
            t = tmps[q]
            p.valu(f"v_accvgpr_read_b32 v{t}, a{a}", [f"a{a}"], [f"v{t}"])
        p.nop(0)
        for q in range(4):
            t = tmps[q]
            p.valu(f"v_mul_f32 v{t}, v{t}, v{tC}", [f"v{t}", f"v{tC}"], [f"v{t}"])
        p.nop(0)
        for q in range(4):
            a = AO(i, r) + q
            t = tmps[q]
            p.valu(f"v_accvgpr_write_b32 a{a}, v{t}", [f"v{t}"], [f"a{a}"])
        p.nop(0)
    for q in range(4):
        v = VL(r) + q
        p.valu(f"v_mul_f32 v{v}, v{v}, v{tC}", [f"v{v}", f"v{tC}"], [f"v{v}"])
    p.nop(1)
    p.branch(f"s_branch RET_{tag}")


def stamp(p, slot):
    if not PROF:
        return
    r0 = 56 + 2 * slot
    p.add(Ins(f"s_memtime s[{r0}:{r0+1}]", "salu", [], [f"s{r0}", f"s{r0+1}"]))


def dump_stamps(p):
    if not PROF:
        return
    p.wait("s_waitcnt lgkmcnt(0)")
    stamp(p, 7)
    p.add(Ins("s_memrealtime s[74:75]", "salu", [], ["s74", "s75"]))
    p.wait("s_waitcnt lgkmcnt(0)")
    p.salu(f"s_lshl_b32 s{S_T0}, s2, 2", ["s2"], [f"s{S_T0}"])
    p.salu(f"s_add_u32 s{S_T0}, s{S_T0}, s{S_WAVE}", [f"s{S_T0}", f"s{S_WAVE}"], [f"s{S_T0}"])
    p.salu(f"s_lshl_b32 s{S_T0}, s{S_T0}, 7", [f"s{S_T0}"], [f"s{S_T0}"])
    p.salu(f"s_load_dwordx2 s[{S_WSP}:{S_WSP+1}], s[0:1], 40", ["s0", "s1"], [f"s{S_WSP}", f"s{S_WSP+1}"])
    p.wait("s_waitcnt lgkmcnt(0)")
    p.salu(f"s_mov_b32 s{SRD_WS}, s{S_WSP}", [f"s{S_WSP}"], [f"s{SRD_WS}"])
    p.salu(f"s_mov_b32 s{SRD_WS+1}, s{S_WSP+1}", [f"s{S_WSP+1}"], [f"s{SRD_WS+1}"])
    p.salu(f"s_mov_b32 s{SRD_WS+2}, 0x100000", [], [f"s{SRD_WS+2}"])
    p.salu(f"s_mov_b32 s{SRD_WS+3}, 0x00020000", [], [f"s{SRD_WS+3}"])
    t = V_E + 76
    for k in range(10):
        p.valu(f"v_mov_b32 v{t+2*k}, s{56+2*k}", [f"s{56+2*k}"], [f"v{t+2*k}"])
        p.valu(f"v_mov_b32 v{t+2*k+1}, s{57+2*k}", [f"s{57+2*k}"], [f"v{t+2*k+1}"])
    for k in range(5):
        p.vmem(f"buffer_store_dwordx4 v[{t+4*k}:{t+4*k+3}], off, s[{SRD_WS}:{SRD_WS+3}], s{S_T0} offset:{16*k}",
               regs("v", t + 4 * k, 4) + [f"s{S_T0}"], [])
    p.wait("s_waitcnt vmcnt(0)")


def build():
    p = Prog()
    slow_list = []

    p.salu("s_cmp_ge_u32 s2, 256", ["s2"], ["scc"])
    p.branch("s_cbranch_scc1 L_END")
    stamp(p, 0)
    if PROF:
        p.add(Ins("s_memrealtime s[72:73]", "salu", [], ["s72", "s73"]))
    p.salu("s_load_dwordx4 s[4:7], s[0:1], 0", ["s0", "s1"], regs("s", 4, 4))
    p.salu("s_load_dwordx4 s[8:11], s[0:1], 16", ["s0", "s1"], regs("s", 8, 4))
    p.valu(f"v_lshrrev_b32 v{V_TMP[0]}, 6, v0", ["v0"], [f"v{V_TMP[0]}"])
    p.valu(f"v_and_b32 v{V_TMP[1]}, 63, v0", ["v0"], [f"v{V_TMP[1]}"])
    p.valu(f"v_readfirstlane_b32 s{S_WAVE}, v{V_TMP[0]}", [f"v{V_TMP[0]}"], [f"s{S_WAVE}"])
    lane = V_TMP[1]
    n_, g_ = V_TMP[2], V_TMP[3]
    p.valu(f"v_and_b32 v{n_}, 15, v{lane}", [f"v{lane}"], [f"v{n_}"])
    p.valu(f"v_lshrrev_b32 v{g_}, 4, v{lane}", [f"v{lane}"], [f"v{g_}"])
    p.salu(f"s_and_b32 s{S_T0}, s2, 7", ["s2"], [f"s{S_T0}"])
    p.salu(f"s_lshl_b32 s{S_T0}, s{S_T0}, 3", [f"s{S_T0}"], [f"s{S_T0}"])
    p.salu(f"s_lshr_b32 s{S_T1}, s2, 5", ["s2"], [f"s{S_T1}"])
    p.salu(f"s_add_u32 s{S_T0}, s{S_T0}, s{S_T1}", [f"s{S_T0}", f"s{S_T1}"], [f"s{S_T0}"])
    p.salu(f"s_lshr_b32 s{S_T1}, s2, 3", ["s2"], [f"s{S_T1}"])
    p.salu(f"s_and_b32 s{S_T1}, s{S_T1}, 3", [f"s{S_T1}"], [f"s{S_T1}"])
    p.salu(f"s_lshl_b32 s{S_HEAD}, s{S_T0}, 2", [f"s{S_T0}"], [f"s{S_HEAD}"])
    p.salu(f"s_add_u32 s{S_HEAD}, s{S_HEAD}, s{S_T1}", [f"s{S_HEAD}", f"s{S_T1}"], [f"s{S_HEAD}"])
    p.salu(f"s_lshl_b32 s{S_LDSB}, s{S_WAVE}, 15", [f"s{S_WAVE}"], [f"s{S_LDSB}"])
    p.salu(f"s_lshl_b32 s{S_T2}, s{S_T0}, 18", [f"s{S_T0}"], [f"s{S_T2}"])
    p.salu(f"s_lshl_b32 s{S_T3}, s{S_WAVE}, 16", [f"s{S_WAVE}"], [f"s{S_T3}"])
    p.salu(f"s_add_u32 s{S_T2}, s{S_T2}, s{S_T3}", [f"s{S_T2}", f"s{S_T3}"], [f"s{S_T2}"])
    p.salu(f"s_mul_i32 s{S_T3}, s{S_HEAD}, 20480", [f"s{S_HEAD}"], [f"s{S_T3}"])
    p.wait("s_waitcnt lgkmcnt(0)")
    for (srd, ptr, off, size) in ((SRD_Q, S_Q, S_T3, 20480), (SRD_K, S_K, S_T2, 65536), (SRD_V, S_V, S_T2, 65536),
                                  (SRD_O, S_OUTP, S_T3, 20480)):
        p.salu(f"s_add_u32 s{srd}, s{ptr}, s{off}", [f"s{ptr}", f"s{off}"], [f"s{srd}", "scc"])
        p.salu(f"s_addc_u32 s{srd+1}, s{ptr+1}, 0", [f"s{ptr+1}", "scc"], [f"s{srd+1}"])
        p.salu(f"s_mov_b32 s{srd+2}, {size}", [], [f"s{srd+2}"])
        p.salu(f"s_mov_b32 s{srd+3}, 0x00020000", [], [f"s{srd+3}"])
    t0, t1, t2 = V_TMP[4], V_TMP[5], V_TMP[6]
    p.valu(f"v_lshlrev_b32 v{t0}, 8, v{n_}", [f"v{n_}"], [f"v{t0}"])
    p.valu(f"v_lshl_add_u32 v{V_QOFF}, v{g_}, 4, v{t0}", [f"v{g_}", f"v{t0}"], [f"v{V_QOFF}"])
    p.valu(f"v_xor_b32 v{t1}, v{n_}, v{g_}", [f"v{n_}", f"v{g_}"], [f"v{t1}"])
    p.valu(f"v_lshlrev_b32 v{t2}, 8, v{g_}", [f"v{g_}"], [f"v{t2}"])
    p.valu(f"v_lshl_add_u32 v{V_KD[0]}, v{t1}, 4, v{t2}", [f"v{t1}", f"v{t2}"], [f"v{V_KD[0]}"])
    for jj in range(1, 4):
        p.valu(f"v_xor_b32 v{V_KD[jj]}, {64*jj}, v{V_KD[0]}", [f"v{V_KD[0]}"], [f"v{V_KD[jj]}"])
    p.valu(f"v_lshl_add_u32 v{V_KR[0]}, v{t1}, 4, v{t0}", [f"v{t1}", f"v{t0}"], [f"v{V_KR[0]}"])
    p.valu(f"v_add_u32 v{V_KR[0]}, s{S_LDSB}, v{V_KR[0]}", [f"s{S_LDSB}", f"v{V_KR[0]}"], [f"v{V_KR[0]}"])
    for s in range(1, 4):
        p.valu(f"v_xor_b32 v{V_KR[s]}, {64*s}, v{V_KR[0]}", [f"v{V_KR[0]}"], [f"v{V_KR[s]}"])
    p.valu(f"v_bfe_u32 v{t0}, v{lane}, 1, 2", [f"v{lane}"], [f"v{t0}"])
    p.valu(f"v_lshlrev_b32 v{t0}, 8, v{t0}", [f"v{t0}"], [f"v{t0}"])
    p.valu(f"v_lshrrev_b32 v{t1}, 3, v{lane}", [f"v{lane}"], [f"v{t1}"])
    p.valu(f"v_lshl_add_u32 v{t0}, v{t1}, 5, v{t0}", [f"v{t1}", f"v{t0}"], [f"v{t0}"])
    p.valu(f"v_and_b32 v{t1}, 1, v{lane}", [f"v{lane}"], [f"v{t1}"])
    p.valu(f"v_lshl_add_u32 v{V_VD[0]}, v{t1}, 4, v{t0}", [f"v{t1}", f"v{t0}"], [f"v{V_VD[0]}"])
    p.valu(f"v_xor_b32 v{V_VD[1]}, 32, v{V_VD[0]}", [f"v{V_VD[0]}"], [f"v{V_VD[1]}"])
    p.valu(f"v_lshlrev_b32 v{t0}, 10, v{g_}", [f"v{g_}"], [f"v{t0}"])
    p.valu(f"v_and_b32 v{t1}, 1, v{g_}", [f"v{g_}"], [f"v{t1}"])
    p.valu(f"v_lshl_add_u32 v{t0}, v{t1}, 7, v{t0}", [f"v{t1}", f"v{t0}"], [f"v{t0}"])
    p.valu(f"v_bfe_u32 v{t1}, v{lane}, 2, 2", [f"v{lane}"], [f"v{t1}"])
    p.valu(f"v_lshl_add_u32 v{t0}, v{t1}, 5, v{t0}", [f"v{t1}", f"v{t0}"], [f"v{t0}"])
    p.valu(f"v_and_b32 v{t1}, 3, v{lane}", [f"v{lane}"], [f"v{t1}"])
    p.valu(f"v_lshl_add_u32 v{t0}, v{t1}, 3, v{t0}", [f"v{t1}", f"v{t0}"], [f"v{t0}"])
    p.valu(f"v_add_u32 v{V_VR[0]}, s{S_LDSB}, v{t0}", [f"s{S_LDSB}", f"v{t0}"], [f"v{V_VR[0]}"])
    p.valu(f"v_xor_b32 v{V_VR[1]}, 128, v{V_VR[0]}", [f"v{V_VR[0]}"], [f"v{V_VR[1]}"])
    p.valu(f"v_lshlrev_b32 v{V_LANE16}, 4, v{lane}", [f"v{lane}"], [f"v{V_LANE16}"])
    p.valu(f"v_lshlrev_b32 v{t0}, 8, v{n_}", [f"v{n_}"], [f"v{t0}"])
    p.valu(f"v_lshl_add_u32 v{V_OUT}, v{g_}, 3, v{t0}", [f"v{g_}", f"v{t0}"], [f"v{V_OUT}"])
    p.salu(f"s_lshr_b32 s{S_T1}, s{S_HEAD}, 2", [f"s{S_HEAD}"], [f"s{S_T1}"])
    p.salu(f"s_lshl_b32 s{S_T2}, s{S_WAVE}, 1", [f"s{S_WAVE}"], [f"s{S_T2}"])
    p.salu(f"s_add_u32 s{S_T1}, s{S_T1}, s{S_T2}", [f"s{S_T1}", f"s{S_T2}"], [f"s{S_T1}"])
    if DELTA:
        p.salu(f"s_and_b32 s{S_T2}, s{S_HEAD}, 3", [f"s{S_HEAD}"], [f"s{S_T2}"])
        p.salu(f"s_mul_i32 s{S_T2}, s{S_T2}, {DELTA}", [f"s{S_T2}"], [f"s{S_T2}"])
        p.salu(f"s_add_u32 s{S_T1}, s{S_T1}, s{S_T2}", [f"s{S_T1}", f"s{S_T2}"], [f"s{S_T1}"])
    p.salu(f"s_and_b32 s{S_T1}, s{S_T1}, {ROTMASK}", [f"s{S_T1}"], [f"s{S_T1}"])
    p.salu(f"s_lshl_b32 s{S_KOFFA}, s{S_T1}, 13", [f"s{S_T1}"], [f"s{S_KOFFA}"])
    p.salu(f"s_add_u32 s{S_KOFFB}, s{S_KOFFA}, 4096", [f"s{S_KOFFA}"], [f"s{S_KOFFB}"])
    p.salu(f"s_mov_b32 s{S_VOFFA}, s{S_KOFFA}", [f"s{S_KOFFA}"], [f"s{S_VOFFA}"])
    p.salu(f"s_mov_b32 s{S_VOFFB}, s{S_KOFFB}", [f"s{S_KOFFB}"], [f"s{S_VOFFB}"])
    p.salu(f"s_mov_b32 s{S_C}, {f32hex(C_SCALE)}", [], [f"s{S_C}"])
    p.salu(f"s_mov_b32 s{S_FIRST}, 1", [], [f"s{S_FIRST}"])
    p.salu(f"s_mov_b32 s{S_CNT}, 0", [], [f"s{S_CNT}"])
    straight(p, k_dma(0))
    tq = V_TMP[7]
    for i in range(5):
        p.salu(f"s_add_u32 s{S_T0}, s{S_WAVE}, {i}", [f"s{S_WAVE}"], [f"s{S_T0}"])
        p.salu(f"s_and_b32 s{S_T0}, s{S_T0}, 3", [f"s{S_T0}"], [f"s{S_T0}"])
        p.salu(f"s_lshl_b32 s{S_T0}, s{S_T0}, 6", [f"s{S_T0}"], [f"s{S_T0}"])
        p.valu(f"v_xor_b32 v{tq}, s{S_T0}, v{V_KD[0]}", [f"s{S_T0}", f"v{V_KD[0]}"], [f"v{tq}"])
        p.salu(f"s_mul_i32 s{S_T1}, s{S_WAVE}, 5120", [f"s{S_WAVE}"], [f"s{S_T1}"])
        p.salu(f"s_add_u32 s{S_T1}, s{S_T1}, {1024*i}", [f"s{S_T1}"], [f"s{S_T1}"])
        p.salu(f"s_add_u32 m0, s{S_T1}, {LDS_Q}", [f"s{S_T1}"], ["m0"])
        p.nop(0)
        p.vmem(f"buffer_load_dwordx4 v{tq}, s[{SRD_Q}:{SRD_Q+3}], s{S_T1} offen {NT} lds",
               [f"v{tq}", f"s{S_T1}", "m0"], [])
        p.nop(1)
    if PROF:
        stamp(p, 1)
        p.wait("s_waitcnt vmcnt(51)")
        stamp(p, 2)
        p.wait("s_waitcnt vmcnt(32)")
        stamp(p, 3)
    for a in range(160):
        p.valu(f"v_accvgpr_write_b32 a{a}, 0", [], [f"a{a}"])
    for v in range(V_L, V_L + 20):
        p.valu(f"v_mov_b32 v{v}, 0", [], [f"v{v}"])
    for v in range(V_VF, V_VF + 32):
        p.valu(f"v_mov_b32 v{v}, 0", [], [f"v{v}"])
    for v in range(V_P[0], V_P[0] + 8):
        p.valu(f"v_mov_b32 v{v}, 0", [], [f"v{v}"])
    for q in range(4):
        p.valu(f"v_mov_b32 v{V_ONES+q}, 0x3f803f80", [], [f"v{V_ONES+q}"])
    for r in range(5):
        p.valu(f"v_mov_b32 v{V_MREF[r]}, 0xff800000", [], [f"v{V_MREF[r]}"])
        p.valu(f"v_mov_b32 v{V_THR[r]}, 0xff800000", [], [f"v{V_THR[r]}"])
        p.valu(f"v_mov_b32 v{V_NEGM[r]}, 0", [], [f"v{V_NEGM[r]}"])
    straight(p, v_dma(0))
    straight(p, k_dma(1))
    straight(p, v_dma(1))
    qa = [V_TMP[5], V_TMP[6], V_TMP[7], V_TMP[8]]
    p.valu(f"v_subrev_u32 v{qa[0]}, s{S_LDSB}, v{V_KR[0]}", [f"s{S_LDSB}", f"v{V_KR[0]}"], [f"v{qa[0]}"])
    p.valu(f"v_add_u32 v{qa[0]}, {LDS_Q}, v{qa[0]}", [f"v{qa[0]}"], [f"v{qa[0]}"])
    for s_ in range(1, 4):
        p.valu(f"v_xor_b32 v{qa[s_]}, {64*s_}, v{qa[0]}", [f"v{qa[0]}"], [f"v{qa[s_]}"])
    p.wait("s_waitcnt vmcnt(24)")
    p.add(Ins("s_barrier", "salu"))
    for r in range(5):
        for s_ in range(4):
            p.ds(f"ds_read_b128 {ar(AQ(r, s_), 4)}, v{qa[s_]} offset:{4096*r}", [f"v{qa[s_]}"], regs("a", AQ(r, s_), 4))
    stamp(p, 4)
    for t in range(2):
        for s in range(4):
            p.add(k_frag_read(t, s, 0))
    p.wait("s_waitcnt lgkmcnt(0)")
    straight(p, k_dma(0))
    for m in qk_mfmas(0, 0):
        p.add(m)
    p.nop(7)

    def emit_block(pb, kdma, vdma, wait_v, wait_k, kread, last, tagp):
        for r in range(5):
            upar = (pb + r) & 1
            rn = (r + 1) % 5
            rp = (r - 1) % 5
            if last and r == 4:
                mf = pv_mfmas(upar ^ 1, rp)
                off = 0
            else:
                mf = qk_mfmas(upar ^ 1, rn) + pv_mfmas(upar ^ 1, rp)
                off = 8
            tag = f"{tagp}_{r}"
            slow_list.append((r, tag))
            va = sm_valu(upar, upar, r, tag)
            pre = []
            attach = {}
            if last and r == 4:
                pre.append(Ins("s_nop 1", "nop", slots=2))
            if r == 3 and kread:
                pre.append(Ins(f"s_waitcnt vmcnt({wait_k})", "wait"))
                k = 0
                for t in range(2):
                    for s_ in range(4):
                        attach[k] = [k_frag_read(t, s_, pb ^ 1)]
                        k += 1
            elif r == 4 and kread:
                pre.append(Ins("s_waitcnt lgkmcnt(0)", "wait"))
                if kdma:
                    d = k_dma(pb ^ 1)
                    attach[0] = [d[0]]
                    for q in range(4):
                        attach[1 + q] = [d[1 + q]]
                    attach[5] = [d[5]]
                    for q in range(4):
                        attach[6 + q] = [d[6 + q]]
                    attach[10] = [d[10], d[11], d[12]]
            elif r == 0:
                pre.append(Ins(f"s_waitcnt vmcnt({wait_v})", "wait"))
                for i in range(8):
                    attach[8 + i] = [v_frag_read(i, 0, pb), v_frag_read(i, 1, pb)]
            elif r == 1:
                pre.append(Ins("s_waitcnt lgkmcnt(0)", "wait"))
                if vdma:
                    d = v_dma(pb)
                    attach[0] = [d[0]]
                    for q in range(4):
                        attach[1 + q] = [d[1 + q]]
                    attach[5] = [d[5]]
                    for q in range(4):
                        attach[6 + q] = [d[6 + q]]
                    attach[10] = [d[10], d[11], d[12]]
            merge_step(p, mf, va, pre=pre, attach=attach)

    p.label("L_LOOP")
    for pb in range(2):
        emit_block(pb, True, True, 24, 24, True, False, f"{pb}")
        if pb == 0:
            p.salu(f"s_mov_b32 s{S_FIRST}, 0", [], [f"s{S_FIRST}"])
    p.salu(f"s_add_u32 s{S_CNT}, s{S_CNT}, 1", [f"s{S_CNT}"], [f"s{S_CNT}", "scc"])
    p.salu(f"s_cmp_lt_u32 s{S_CNT}, {(NBLK-2)//2}", [f"s{S_CNT}"], ["scc"])
    p.branch("s_cbranch_scc1 L_LOOP")
    stamp(p, 5)
    emit_block(0, False, False, 16, 8, True, False, "6")
    emit_block(1, False, False, 0, 0, False, True, "7")

    p.nop(1)
    for m in pv_mfmas(1, 4):
        p.add(m)

    epilogue(p)
    p.label("L_END")
    p.add(Ins("s_endpgm", "branch"))
    for (r, tag) in slow_list:
        slow_path(p, r, tag)
    return p


def epilogue(p):
    E = V_E
    p.wait("s_waitcnt vmcnt(0)")
    p.nop(7)
    p.nop(7)
    t0, t1 = V_TMP[0], V_TMP[1]
    p.valu(f"v_and_b32 v{t0}, 15, v0", ["v0"], [f"v{t0}"])
    p.salu(f"s_mul_i32 s{S_T0}, s{S_WAVE}, 640", [f"s{S_WAVE}"], [f"s{S_T0}"])
    p.salu(f"s_add_u32 s{S_T0}, s{S_T0}, {LDS_ML}", [f"s{S_T0}"], [f"s{S_T0}"])
    p.valu(f"v_lshl_add_u32 v{t1}, v{t0}, 3, s{S_T0}", [f"v{t0}", f"s{S_T0}"], [f"v{t1}"])
    p.valu(f"v_lshlrev_b32 v{t0}, 3, v{t0}", [f"v{t0}"], [f"v{t0}"])
    p.valu(f"v_add_u32 v{t0}, {LDS_ML}, v{t0}", [f"v{t0}"], [f"v{t0}"])
    for r in range(5):
        p.ds(f"ds_write2_b32 v{t1}, v{V_MREF[r]}, v{VL(r)} offset0:{32*r} offset1:{32*r+1}",
             [f"v{t1}", f"v{V_MREF[r]}", f"v{VL(r)}"], [])
    p.salu(f"s_cmp_eq_u32 s{S_WAVE}, 1", [f"s{S_WAVE}"], ["scc"])
    p.branch("s_cbranch_scc1 L_EPI1")
    p.salu(f"s_cmp_eq_u32 s{S_WAVE}, 2", [f"s{S_WAVE}"], ["scc"])
    p.branch("s_cbranch_scc1 L_EPI2")
    p.salu(f"s_cmp_eq_u32 s{S_WAVE}, 3", [f"s{S_WAVE}"], ["scc"])
    p.branch("s_cbranch_scc1 L_EPI3")
    for w in range(4):
        p.label(f"L_EPI{w}")
        epilogue_wave(p, w)
        if w < 3:
            p.branch("s_branch L_END")


def epilogue_wave(p, w):
    E = V_E
    vw = E
    p.valu(f"v_add_u32 v{vw}, {w*LDS_WAVE}, v{V_LANE16}", [f"v{V_LANE16}"], [f"v{vw}"])
    for k in range(3):
        wd = (w + 1 + k) & 3
        for ti in range(10):
            i = 2 * wd + (ti // 5)
            r = ti % 5
            off = k * 10240 + ti * 1024
            a = AO(i, r)
            p.ds(f"ds_write_b128 v{vw}, {ar(a, 4)} offset:{off}", [f"v{vw}"] + regs("a", a, 4), [])
    p.wait("s_waitcnt lgkmcnt(0)")
    p.add(Ins("s_barrier", "salu"))
    stamp(p, 6)
    n8 = V_TMP[0]
    RB = 44
    MLB = 164
    FB = 204
    ACC = 224
    PK = 228
    RA = 240
    srcs = [ws for ws in range(4) if ws != w]
    for q, ws in enumerate(srcs):
        k = (w - ws - 1) & 3
        p.valu(f"v_add_u32 v{RA+q}, {ws*LDS_WAVE + k*10240}, v{V_LANE16}", [f"v{V_LANE16}"], [f"v{RA+q}"])
    for ws in range(4):
        for r in range(5):
            d = MLB + 2 * (ws * 5 + r)
            p.ds(f"ds_read_b64 {vr(d, 2)}, v{n8} offset:{ws*640 + r*128}", [f"v{n8}"], regs("v", d, 2))
    for ti in range(10):
        for q, ws in enumerate(srcs):
            d = RB + 4 * (3 * ti + q)
            p.ds(f"ds_read_b128 {vr(d, 4)}, v{RA+q} offset:{ti*1024}", [f"v{RA+q}"], regs("v", d, 4))
    p.wait("s_waitcnt lgkmcnt(15)")
    p.wait("s_waitcnt lgkmcnt(15)")
    p.wait("s_waitcnt lgkmcnt(0)")
    ta, tb = V_TMP[2], V_TMP[3]
    for r in range(5):
        m = [MLB + 2 * (ws * 5 + r) for ws in range(4)]
        l = [x + 1 for x in m]
        f = [FB + ws * 5 + r for ws in range(4)]
        p.valu(f"v_max3_f32 v{ta}, v{m[0]}, v{m[1]}, v{m[2]}", [f"v{m[0]}", f"v{m[1]}", f"v{m[2]}"], [f"v{ta}"])
        p.valu(f"v_max_f32 v{ta}, v{ta}, v{m[3]}", [f"v{ta}", f"v{m[3]}"], [f"v{ta}"])
        for ws in range(4):
            p.valu(f"v_sub_f32 v{f[ws]}, v{m[ws]}, v{ta}", [f"v{m[ws]}", f"v{ta}"], [f"v{f[ws]}"])
        for ws in range(4):
            p.valu(f"v_mul_f32 v{f[ws]}, s{S_C}, v{f[ws]}", [f"s{S_C}", f"v{f[ws]}"], [f"v{f[ws]}"])
        for ws in range(4):
            p.trans(f"v_exp_f32 v{f[ws]}, v{f[ws]}", [f"v{f[ws]}"], [f"v{f[ws]}"])
        p.nop(0)
        p.valu(f"v_mul_f32 v{tb}, v{f[0]}, v{l[0]}", [f"v{f[0]}", f"v{l[0]}"], [f"v{tb}"])
        for ws in range(1, 4):
            p.valu(f"v_fmac_f32 v{tb}, v{f[ws]}, v{l[ws]}", [f"v{tb}", f"v{f[ws]}", f"v{l[ws]}"], [f"v{tb}"])
        p.trans(f"v_rcp_f32 v{tb}, v{tb}", [f"v{tb}"], [f"v{tb}"])
        p.nop(0)
        for ws in range(4):
            p.valu(f"v_mul_f32 v{f[ws]}, v{f[ws]}, v{tb}", [f"v{f[ws]}", f"v{tb}"], [f"v{f[ws]}"])
    for ti in range(10):
        i = 2 * w + (ti // 5)
        r = ti % 5
        a = AO(i, r)
        for e in range(4):
            p.valu(f"v_accvgpr_read_b32 v{ACC+e}, a{a+e}", [f"a{a+e}"], [f"v{ACC+e}"])
        p.nop(0)
        fw = FB + w * 5 + r
        for e in range(4):
            p.valu(f"v_mul_f32 v{ACC+e}, v{ACC+e}, v{fw}", [f"v{ACC+e}", f"v{fw}"], [f"v{ACC+e}"])
        for q, ws in enumerate(srcs):
            f = FB + ws * 5 + r
            for e in range(4):
                s_ = RB + 4 * (3 * ti + q) + e
                p.valu(f"v_fmac_f32 v{ACC+e}, v{s_}, v{f}", [f"v{ACC+e}", f"v{s_}", f"v{f}"], [f"v{ACC+e}"])
        pk = PK if ti % 2 == 0 else PK + 4
        p.valu(f"v_cvt_pk_bf16_f32 v{pk}, v{ACC}, v{ACC+1}", [f"v{ACC}", f"v{ACC+1}"], [f"v{pk}"])
        p.valu(f"v_cvt_pk_bf16_f32 v{pk+1}, v{ACC+2}, v{ACC+3}", [f"v{ACC+2}", f"v{ACC+3}"], [f"v{pk+1}"])
        if r == 0:
            so = "0"
        else:
            p.salu(f"s_mov_b32 s{S_T0}, {4096*r}", [], [f"s{S_T0}"])
            so = f"s{S_T0}"
        p.vmem(f"buffer_store_dwordx2 {vr(pk, 2)}, v{V_OUT}, s[{SRD_O}:{SRD_O+3}], {so} offen offset:{32*i}",
               regs("v", pk, 2) + [f"v{V_OUT}"], [])
        p.nop(1)
    p.wait("s_waitcnt vmcnt(0)")
    dump_stamps(p)


def check_hazards(ins):
    errs = []
    seq = [x for x in ins if x.kind not in ("label",)]
    n = len(seq)

    def dist_states(i, j):
        d = 0
        for k in range(i + 1, j):
            x = seq[k]
            d += x.slots if x.kind == "nop" else 1
        return d

    for j, y in enumerate(seq):
        for i in range(max(0, j - 24), j):
            x = seq[i]
            d = None
            if x.kind == "mfma":
                D = set(x.wr)
                if y.kind in ("valu", "trans", "ds", "vmem"):
                    if D & (set(y.rd) | set(y.wr)):
                        d = dist_states(i, j)
                        if d < 8:
                            errs.append(f"MFMA D->{y.kind} dist {d}: {x.text} | {y.text}")
                if y.kind == "mfma":
                    ab = set(y.rd) - set(y.srcc)
                    if D & ab:
                        d = dist_states(i, j)
                        if d < 8:
                            errs.append(f"MFMA D->MFMA AB dist {d}: {x.text} | {y.text}")
                    if (D & set(y.srcc)) and set(y.srcc) != D:
                        errs.append(f"MFMA D->partial SrcC: {x.text} | {y.text}")
                if y.kind in ("valu", "trans") and (set(x.srcc) & set(y.wr)):
                    d = dist_states(i, j)
                    if d < 3:
                        errs.append(f"MFMA SrcC WAR dist {d}: {x.text} | {y.text}")
            if x.kind in ("valu", "trans"):
                W = set(x.wr)
                if y.kind == "mfma" and (W & set(y.rd)):
                    d = dist_states(i, j)
                    if d < 2:
                        errs.append(f"VALU->MFMA dist {d}: {x.text} | {y.text}")
                if "permlane" in y.text and (W & set(y.rd)):
                    d = dist_states(i, j)
                    if d < 2:
                        errs.append(f"VALU->permlane dist {d}: {x.text} | {y.text}")
                if "readfirstlane" in y.text and (W & set(y.rd)):
                    d = dist_states(i, j)
                    if d < 1:
                        errs.append(f"VALU->readfirstlane dist {d}: {x.text} | {y.text}")
                sg = {r_ for r_ in W if r_.startswith("s") or r_ == "vcc"}
                if sg and y.kind in ("valu", "trans") and (sg & set(y.rd)):
                    d = dist_states(i, j)
                    if d < 2:
                        errs.append(f"VALU sgpr->VALU dist {d}: {x.text} | {y.text}")
                if sg and y.kind == "vmem" and (sg & set(y.rd)):
                    d = dist_states(i, j)
                    if d < 5:
                        errs.append(f"VALU sgpr->VMEM dist {d}: {x.text} | {y.text}")
            if x.kind == "trans" and y.kind == "valu" and (set(x.wr) & set(y.rd)):
                d = dist_states(i, j)
                if d < 1:
                    errs.append(f"trans->VALU dist {d}: {x.text} | {y.text}")
            if x.kind == "salu" and "m0" in x.wr and y.kind == "vmem" and "m0" in y.rd:
                d = dist_states(i, j)
                if d < 1:
                    errs.append(f"m0->DMA dist {d}: {x.text} | {y.text}")
            if x.kind == "vmem" and "store" in x.text and y.kind in ("valu", "trans"):
                data = {r_ for r_ in x.rd if r_.startswith("v")}
                if data & set(y.wr):
                    d = dist_states(i, j)
                    if d < 2:
                        errs.append(f"store data WAR dist {d}: {x.text} | {y.text}")
    return errs


def main(out_path):
    p = build()
    ins = p.ins
    li = next(k for k, x in enumerate(ins) if x.text == "L_LOOP:")
    le = next(k for k, x in enumerate(ins) if x.text == "s_cbranch_scc1 L_LOOP")
    endk = next(k for k, x in enumerate(ins) if x.text == "L_END:")
    body = ins[li:le + 1]
    lin = ins[:le + 1] + body + ins[le + 1:endk]
    errs = check_hazards(lin)
    errs += check_hazards(ins[endk:])
    if errs:
        print("HAZARDS:\n" + "\n".join(errs[:50]), file=sys.stderr)
        sys.exit(1)
    L = []
    L.append(f"; @launch grid=(256,1,1) block=(256,1,1) lds={LDS_TOTAL}")
    L.append('.amdgcn_target "amdgcn-amd-amdhsa--gfx950"')
    L.append(".text")
    L.append(".globl standalone__gqa_softmax__near_ridge_kernel")
    L.append(".p2align 8")
    L.append(".type standalone__gqa_softmax__near_ridge_kernel,@function")
    L.append("standalone__gqa_softmax__near_ridge_kernel:")
    for x in ins:
        if x.kind == "label":
            L.append(x.text)
        else:
            L.append("    " + x.text)
    L.append('.section .rodata,"a"')
    L.append(".p2align 6")
    L.append(".amdhsa_kernel standalone__gqa_softmax__near_ridge_kernel")
    L.append("  .amdhsa_next_free_vgpr 496")
    L.append(f"  .amdhsa_next_free_sgpr {NUM_SGPR}")
    L.append("  .amdhsa_accum_offset 256")
    L.append("  .amdhsa_group_segment_fixed_size 0")
    L.append("  .amdhsa_kernarg_size 48")
    L.append("  .amdhsa_user_sgpr_count 2")
    L.append("  .amdhsa_user_sgpr_kernarg_segment_ptr 1")
    L.append("  .amdhsa_system_sgpr_workgroup_id_x 1")
    L.append(".end_amdhsa_kernel")
    open(out_path, "w").write("\n".join(L) + "\n")
    nm = sum(1 for x in ins if x.kind == "mfma")
    print(f"wrote {out_path}: {len(ins)} instrs, {nm} mfma")


if __name__ == "__main__":
    if len(sys.argv) > 2 and sys.argv[2] == "prof":
        PROF = True
    if len(sys.argv) > 3:
        DELTA = int(sys.argv[3])
    main(sys.argv[1] if len(sys.argv) > 1 else "standalone__gqa_softmax__near_ridge.s")
```
